```python
import torch

def _softmax(x, axis=-1):
    return torch.softmax(x, dim=axis)
def _gelu(x):
    return torch.nn.functional.gelu(x, approximate="tanh")
def _silu(x):
    return torch.nn.functional.silu(x)
def _sigmoid(x):
    return torch.sigmoid(x)
def _layernorm(x, axis=-1, eps=1e-5):
    m = x.mean(dim=axis, keepdim=True)
    v = x.var(dim=axis, keepdim=True, unbiased=False)
    return (x - m) / torch.sqrt(v + eps)
def _scatter_add(tgt, idx, src, axis=0):
    return tgt.clone().index_add_(axis, idx, src)
def _segment_sum(src, seg, n):
    out = torch.zeros((n,) + src.shape[1:], dtype=src.dtype)
    return out.index_add_(0, seg, src)
def _pad(x, pw):
    flat = tuple(v for pair in reversed(pw) for v in pair)
    return torch.nn.functional.pad(x, flat)

kernel_name = 'sequential_preLN__compressed_kv_cla__glu_gated_reglu__decode'

def setup_inputs():

    _w = (lambda a: (lambda t: t.to(torch.bfloat16) if t.is_floating_point() else t)(torch.as_tensor(a)))
    def _A_setup():
        B, H, Sq, Sk, D, M = 4, 32, 1, 4096, 128, 512
        Dc = 4 * D
        return {
            "x": _w((lambda *s: torch.randn(*s, dtype=torch.bfloat16) * 0.05)(B, Sq, M)),
            "c_kv": _w((lambda *s: torch.randn(*s, dtype=torch.bfloat16) * 0.8)(B, Sk, Dc)),
            "w_q": _w((lambda *s: torch.randn(*s, dtype=torch.bfloat16) * 1.6)(M, H, D) * (M ** -0.5)),
            "w_uk": _w((lambda *s: torch.randn(*s, dtype=torch.bfloat16) * 1.6)(Dc, H, D) * (Dc ** -0.5)),
            "w_uv": _w((lambda *s: torch.randn(*s, dtype=torch.bfloat16) * 0.8)(Dc, H, D) * (Dc ** -0.5)),
            "w_o": _w((lambda *s: torch.randn(*s, dtype=torch.bfloat16) * 0.8)(H, D, M) * ((H * D) ** -0.5)),
        }
    _A_in = _A_setup()

    def _B_setup():
        B, S, D, F = 4, 1, 512, 1376
        return {
            "x": _w((lambda *s: torch.randn(*s, dtype=torch.bfloat16) * 0.05)(B, S, D)),
            "W_gate": _w((lambda *s: torch.randn(*s, dtype=torch.bfloat16) * 0.4)(D, F) * (2.0 / D) ** 0.5),
            "W_up": _w((lambda *s: torch.randn(*s, dtype=torch.bfloat16) * 0.4)(D, F) * (2.0 / D) ** 0.5),
            "W_down": _w((lambda *s: torch.randn(*s, dtype=torch.bfloat16) * 0.4)(F, D) * (1.0 / F) ** 0.5),
        }
    _B_in = _B_setup()

    return {
        "A_x": _A_in["x"],
        "A_c_kv": _A_in["c_kv"],
        "A_w_q": _A_in["w_q"],
        "A_w_uk": _A_in["w_uk"],
        "A_w_uv": _A_in["w_uv"],
        "A_w_o": _A_in["w_o"],
        "B_x": _B_in["x"],
        "B_W_gate": _B_in["W_gate"],
        "B_W_up": _B_in["W_up"],
        "B_W_down": _B_in["W_down"],
    }

def reference(A_x, A_c_kv, A_w_q, A_w_uk, A_w_uv, A_w_o, B_x, B_W_gate, B_W_up, B_W_down):
    def _A_ref(x, c_kv, w_q, w_uk, w_uv, w_o):
        B, Sq, M = x.shape[0], x.shape[1], x.shape[2]
        Sk = c_kv.shape[1]
        H, D = w_q.shape[1], w_q.shape[2]
        q = torch.einsum("bqm,mhd->bhqd", x, w_q)
        k = torch.einsum("bkc,chd->bhkd", c_kv, w_uk)
        v = torch.einsum("bkc,chd->bhkd", c_kv, w_uv)
        scores = torch.einsum("bhqd,bhkd->bhqk", q, k) * (D ** -0.5)
        off = Sk - Sq
        qi = torch.arange(Sq)[:, None]
        kj = torch.arange(Sk)[None, :]
        cmask = kj <= (qi + off)
        scores = torch.where(cmask[None, None], scores, -1e9)
        p = _softmax(scores, axis=-1)
        ctx = torch.einsum("bhqk,bhkd->bhqd", p, v)
        return torch.einsum("bhqd,hdm->bqm", ctx, w_o)

    def _B_ref(x, W_gate, W_up, W_down):
        gate = torch.einsum("bsd,df->bsf", x, W_gate)
        up = torch.einsum("bsd,df->bsf", x, W_up)
        gate = gate * (lambda x, dt: x.to(dt))(gate > 0, gate.dtype)
        h = gate * up
        return torch.einsum("bsf,fd->bsd", h, W_down)

    x = A_x
    h = x + _A_ref(_layernorm(x, axis=-1), A_c_kv, A_w_q, A_w_uk, A_w_uv, A_w_o)
    h2 = h + _B_ref(_layernorm(h, axis=-1), B_W_gate, B_W_up, B_W_down)
    return h2
```

```python
import re

class Asm:
    def __init__(self):
        self.lines = []
        self.vm = 0
        self.marks = {}
    def __call__(self, s):
        for l in s.split("\n"):
            l = l.strip()
            if l: self.lines.append(l)
    def c(self, s): self.lines.append("; " + s)
    def label(self, name): self.lines.append(name + ":")
    def vmem(self, s, mark=None):
        self(s); self.vm += 1
        if mark is not None: self.marks[mark] = self.vm
    def mark(self, name): self.marks[name] = self.vm
    def vmwait(self, mark):
        n = self.vm - self.marks[mark]
        assert 0 <= n <= 63, (mark, n)
        self("s_waitcnt vmcnt(%d)" % n)
    def vmreset(self): self.vm = 0; self.marks = {}
    def nop(self, n):
        while n > 0:
            k = min(n, 16); self("s_nop %d" % (k-1)); n -= k
    def text(self): return "\n".join(("    " + l if not l.endswith(":") else l) for l in self.lines)

REG = re.compile(r"\b([vas])\[(\d+):(\d+)\]|\b([vas])(\d+)\b")
def regs_of(op):
    out = []
    for m in REG.finditer(op):
        if m.group(1): out += [(m.group(1), i) for i in range(int(m.group(2)), int(m.group(3))+1)]
        else: out.append((m.group(4), int(m.group(5))))
    if re.search(r"\bvcc\b", op): out += [("s", 106), ("s", 107)]
    if re.search(r"\bexec\b", op): out += [("s", 126), ("s", 127)]
    if re.search(r"\bm0\b", op): out.append(("s", 124))
    return out

TRANS = ("v_exp_f32","v_log_f32","v_rcp_f32","v_rsq_f32","v_sqrt_f32","v_sin_f32","v_cos_f32")
class I:
    pass
def parse(line):
    s = line.split(";")[0].strip()
    if not s or s.endswith(":") or s.startswith("."): return None
    parts = s.split(None, 1)
    ins = I(); ins.text = s; ins.op = parts[0]
    ops = [o.strip() for o in parts[1].split(",")] if len(parts) > 1 else []
    ins.ops = ops
    op = ins.op
    ins.kind = "other"; ins.w = []; ins.r = []
    ins.slots = 1
    if op == "s_nop": ins.slots = int(ops[0]) + 1; ins.kind = "nop"; return ins
    allr = lambda lst: [r for o in lst for r in regs_of(o)]
    if op.startswith("v_mfma") or op.startswith("v_smfmac"):
        ins.kind = "mfma"; ins.w = regs_of(ops[0]); ins.ra = regs_of(ops[1]); ins.rb = regs_of(ops[2]); ins.rc = regs_of(ops[3])
        if op.startswith("v_smfmac"): ins.rc = regs_of(ops[0]) ; ins.rb += regs_of(ops[3])
        ins.r = ins.ra + ins.rb + ins.rc
        ins.passes = 8 if "32x32" in op else 4
    elif op.startswith("v_cmp"):
        ins.kind = "valu"; ins.w = regs_of(ops[0]); ins.r = allr(ops[1:])
        if op.startswith("v_cmpx"): ins.w += [("s",126),("s",127)]
    elif op.startswith("v_readlane") or op.startswith("v_readfirstlane"):
        ins.kind = "valu"; ins.w = regs_of(ops[0]); ins.r = allr(ops[1:]); ins.lane = True
    elif op.startswith("v_permlane"):
        ins.kind = "valu"; ins.w = allr(ops[:2]); ins.r = allr(ops[:2]); ins.perm = True
    elif op.startswith("v_"):
        ins.kind = "valu"; ins.w = regs_of(ops[0]); ins.r = allr(ops[1:])
        if op.startswith(("v_fmac","v_dot2c","v_pk_fmac")): ins.r += ins.w
        if op.startswith(("v_add_co","v_sub_co","v_addc_co","v_subb_co")): ins.w += regs_of(ops[1]); ins.r = allr(ops[2:])
        if op.startswith("v_cndmask") and len(ops) == 3: ins.r += [("s",106),("s",107)]
        if "dpp" in s or "quad_perm" in s or "row_" in s: ins.dpp = True
        if op.split("_e")[0] in TRANS or op in TRANS: ins.trans = True
    elif op.startswith("ds_"):
        ins.kind = "ds"
        if op.startswith(("ds_read","ds_bpermute","ds_permute","ds_swizzle")): ins.w = regs_of(ops[0]); ins.r = allr(ops[1:])
        else: ins.r = allr(ops)
    elif op.startswith(("buffer_","global_")):
        ins.kind = "vmem"
        if "load" in op and " lds" not in s and "load_lds" not in op: ins.w = regs_of(ops[0]); ins.r = allr(ops[1:])
        else: ins.r = allr(ops)
        if " lds" in s or "load_lds" in op: ins.r.append(("s",124)); ins.dma = True
        if "store" in op and ("x4" in op or "x3" in op):
            ins.widestore = regs_of(ops[1]) if op.startswith("global") else regs_of(ops[0])
    elif op.startswith("s_"):
        ins.kind = "salu"
        if op.startswith(("s_cmp","s_cbranch","s_branch","s_waitcnt","s_barrier","s_endpgm","s_sleep","s_setprio","s_bitcmp")): ins.r = allr(ops)
        else: ins.w = regs_of(ops[0]) if ops else []; ins.r = allr(ops[1:])
        if "saveexec" in op: ins.w += [("s",126),("s",127)]
    return ins

def check_hazards(text):
    ins = [i for i in (parse(l) for l in text.split("\n")) if i]
    probs = []
    isv = lambda r: r[0] in "va"
    for n, cur in enumerate(ins):
        dist = 0
        for p in range(n-1, max(-1, n-40), -1):
            prev = ins[p]
            def need(k, why):
                if dist < k: probs.append("%s: need %d have %d: [%s] -> [%s]" % (why, k, dist, prev.text, cur.text))
            pw = set(prev.w); cr = set(cur.r); cw = set(cur.w)
            if prev.kind == "valu":
                vw = {r for r in pw if isv(r)}; sw = {r for r in pw if r[0] == "s"}
                if cur.kind == "mfma" and vw & cr: need(2, "valu->mfma")
                if cur.kind == "valu" and getattr(cur,"dpp",False) and vw & cr: need(2, "valu->dpp")
                if cur.kind == "valu" and getattr(cur,"perm",False) and vw & cr: need(2, "valu->permlane")
                if cur.kind == "valu" and getattr(cur,"lane",False) and vw & cr: need(1, "valu->readlane")
                if getattr(prev,"trans",False) and cur.kind in ("valu","mfma") and vw & cr and not getattr(cur,"trans",False): need(1, "trans->valu")
                if cur.kind == "vmem" and sw & cr: need(5, "valu sgpr->vmem")
                if cur.kind == "valu" and sw & cr: need(2, "valu sgpr->valu")
                if cur.kind == "valu" and getattr(cur,"dpp",False) and (("s",126) in sw): need(5, "valu exec->dpp")
                if cur.kind == "mfma" and (("s",126) in sw): need(4, "valu exec->mfma")
            if prev.kind == "mfma":
                d = set(prev.w)
                k = 8 if prev.passes == 4 else 12
                if cur.kind == "mfma":
                    if d & (set(cur.ra) | set(cur.rb)): need(k, "mfma D->A/B")
                    if d & set(cur.rc) and (set(cur.rc) != d): need(k-2, "mfma D->C overlap")
                    if d & cw and not (set(cur.rc) == d and cw == d) : need(k-2, "mfma D->D overlap WAW")
                elif cur.kind in ("valu","ds","vmem") and d & (cr | cw): need(k, "mfma D->valu/mem")
                if cur.kind == "valu" and set(prev.rc) & cw: need(3 if prev.passes == 4 else 7, "mfma C WAR")
            if prev.kind == "salu" and ("s",124) in pw and getattr(cur,"dma",False): need(1, "m0->dma")
            if prev.kind == "vmem" and hasattr(prev,"widestore") and cur.kind == "valu" and set(prev.widestore) & cw: need(2, "wide store WAR")
            if prev.kind == "salu" and (("s",126) in pw) and cur.kind == "valu" and getattr(cur,"dpp",False): need(0, "salu exec->dpp")
            dist += prev.slots
            if dist > 20: break
    return probs
```

```python
import sys
from asmlib import Asm, check_hazards

KNAME = "sequential_preLN__compressed_kv_cla__glu_gated_reglu__decode_kernel"

WS_QA   = 0x000000
WS_ML   = 0x020000
WS_OUTP = 0x030000
WS_HMID = 0x050000
WS_PART = 0x100000
HM_ROW = 2816

X, CKV, WQ, WUK, WUV, WO, BX, WG, WU, WD, OUT, DBG, WS = [4 + 2*i for i in range(13)]
S_XCD, S_SLOT, S_W = 30, 31, 33
S_PC = 34
SRD0, SRD1, SRD2 = 36, 40, 44
S_A, S_B = 48, 49
S_OFF = 50
S_T0, S_T1, S_T2, S_T3 = 51, 52, 53, 54
S_SPIN = 55
S_M = 56
S_M2 = 58
SPIN_MAX = 1 << 18

def sp(r): return "s[%d:%d]" % (r, r+1)
def sq(r): return "s[%d:%d]" % (r, r+3)
def vr(r, n): return "v[%d:%d]" % (r, r+n-1) if n > 1 else "v%d" % r
def ar(r, n): return "a[%d:%d]" % (r, r+n-1) if n > 1 else "a%d" % r

QSCALE = (128 ** -0.5) * 1.4426950408889634
import struct
def f2u(x): return "0x%08x" % struct.unpack("<I", struct.pack("<f", x))[0]

class Cfg:
    stage = 99
    nt = " nt"
    wpre = 0
    depth = 12

def srd(A, dst, ptr, size, add_sregs=(), add_const=0):
    A("s_mov_b32 s%d, s%d" % (dst, ptr))
    A("s_mov_b32 s%d, s%d" % (dst+1, ptr+1))
    for r in add_sregs:
        A("s_add_u32 s%d, s%d, s%d" % (dst, dst, r))
        A("s_addc_u32 s%d, s%d, 0" % (dst+1, dst+1))
    if add_const:
        A("s_add_u32 s%d, s%d, 0x%x" % (dst, dst, add_const))
        A("s_addc_u32 s%d, s%d, 0" % (dst+1, dst+1))
    A("s_mov_b32 s%d, 0x%x" % (dst+2, size))
    A("s_mov_b32 s%d, 0x20000" % (dst+3))

def wave_allsum(A, v, t):
    for p in ("quad_perm:[1,0,3,2]", "quad_perm:[2,3,0,1]", "row_half_mirror", "row_mirror"):
        A("s_nop 1")
        A("v_add_f32_dpp v%d, v%d, v%d %s row_mask:0xf bank_mask:0xf" % (v, v, v, p))
    for sw in ("v_permlane16_swap_b32", "v_permlane32_swap_b32"):
        A("v_mov_b32 v%d, v%d" % (t, v))
        A("s_nop 1")
        A("%s v%d, v%d" % (sw, v, t))
        A("v_add_f32 v%d, v%d, v%d" % (v, v, t))

def spin_guard(A, lbl_fail):
    A("s_add_u32 s%d, s%d, 1" % (S_SPIN, S_SPIN))
    A("s_cmp_gt_u32 s%d, 0x%x" % (S_SPIN, SPIN_MAX))
    A("s_cbranch_scc1 %s" % lbl_fail)

def prologue(A):
    A("s_cmp_ge_u32 s2, 0x100")
    A("s_cbranch_scc1 L_end")
    A("s_load_dwordx16 s[4:19], s[0:1], 0x0")
    A("s_load_dwordx8 s[20:27], s[0:1], 0x40")
    A("s_load_dwordx2 s[28:29], s[0:1], 0x60")
    A("s_getpc_b64 %s" % sp(S_PC))
    A.label("L_pc")
    A("v_lshrrev_b32 v1, 6, v0")
    A("v_and_b32 v0, 63, v0")
    A("s_and_b32 s%d, s2, 7" % S_XCD)
    A("s_lshr_b32 s%d, s2, 3" % S_SLOT)
    A("v_readfirstlane_b32 s%d, v1" % S_W)
    A("s_lshl_b32 s%d, s%d, 10" % (S_T0, S_SLOT))
    A("v_lshlrev_b32 v2, 2, v0")
    A("v_lshl_add_u32 v2, v1, 8, v2")
    A("v_add_u32 v2, s%d, v2" % S_T0)
    A("v_min_u32 v2, L_code_end-L_pc-4, v2")
    A("global_load_dword v3, v2, %s" % sp(S_PC))
    A("s_mov_b32 s%d, 0" % S_SPIN)
    A("s_cmp_ge_u32 s%d, 16" % S_SLOT)
    A("s_cbranch_scc1 L_A")

LW_IMG = 0
LW_LNX = 131072
LW_QB  = 139264
LW_CTXC = 140288
LW_CTX = 142336

def role_W(A, cfg):
    H, I = S_A, S_B
    A.label("L_W")
    A.vmreset()
    A("s_lshr_b32 s%d, s%d, 2" % (S_T0, S_SLOT))
    A("s_lshl_b32 s%d, s%d, 2" % (H, S_XCD))
    A("s_add_u32 s%d, s%d, s%d" % (H, H, S_T0))
    A("s_and_b32 s%d, s%d, 3" % (I, S_SLOT))
    V_G, V_N = 116, 117
    A("v_lshrrev_b32 v%d, 4, v0" % V_G)
    A("v_and_b32 v%d, 15, v0" % V_N)
    A("v_lshlrev_b32 v118, 4, v0")
    V_CL = 12
    A("s_lshl_b32 s%d, s%d, 5" % (S_T0, I))
    A("s_add_u32 s%d, s%d, s%d" % (S_T0, S_T0, H))
    A("s_cmp_eq_u32 s%d, 0" % S_W)
    A("s_cbranch_scc1 L_W_cl0")
    A("s_cmp_eq_u32 s%d, 2" % S_W)
    A("s_cbranch_scc1 L_W_cl2")
    A("s_lshl_b32 s%d, s%d, 10" % (S_T1, S_T0))
    A("s_add_u32 s%d, s%d, 0x%x" % (S_T1, S_T1, WS_OUTP))
    A("v_add_u32 v%d, s%d, v118" % (V_CL, S_T1))
    A("s_branch L_W_cld")
    A.label("L_W_cl0")
    A("s_lshl_b32 s%d, s%d, 10" % (S_T1, H))
    A("s_lshl_b32 s%d, s%d, 8" % (S_T2, I))
    A("s_add_u32 s%d, s%d, s%d" % (S_T1, S_T1, S_T2))
    A("v_lshlrev_b32 v%d, 4, v%d" % (V_CL, V_N))
    A("v_lshl_add_u32 v%d, v%d, 15, v%d" % (V_CL, V_G, V_CL))
    A("v_add_u32 v%d, s%d, v%d" % (V_CL, S_T1, V_CL))
    A("s_branch L_W_cld")
    A.label("L_W_cl2")
    A("s_lshl_b32 s%d, s%d, 8" % (S_T1, S_T0))
    A("s_add_u32 s%d, s%d, 0x%x" % (S_T1, S_T1, WS_ML))
    A("s_lshl_b32 s%d, s%d, 2" % (S_T2, H))
    A("s_add_u32 s%d, s%d, s%d" % (S_T2, S_T2, I))
    A("s_lshl_b32 s%d, s%d, 7" % (S_T2, S_T2))
    A("s_add_u32 s%d, s%d, 0x%x" % (S_T2, S_T2, WS_HMID - 256))
    A("v_lshlrev_b32 v%d, 4, v%d" % (V_CL, V_N))
    A("v_add_u32 v%d, s%d, v%d" % (V_CL, S_T1, V_CL))
    A("v_add_u32 v13, s%d, v118" % S_T2)
    A("v_lshrrev_b32 v14, 3, v0")
    A("v_cmp_eq_u32 vcc, 2, v14")
    A("s_nop 1")
    A("v_cndmask_b32 v%d, v%d, v13, vcc" % (V_CL, V_CL))
    A.label("L_W_cld")
    A("v_mov_b32 v8, -1\nv_mov_b32 v9, -1\nv_mov_b32 v10, -1\nv_mov_b32 v11, -1")
    V_XO, V_WQ, V_UK0, V_UK1 = 13, 119, 14, 15
    A("s_lshl_b32 s%d, s%d, 10" % (S_T1, S_W))
    A("v_add_u32 v%d, s%d, v118" % (V_XO, S_T1))
    A("v_lshrrev_b32 v16, 5, v0")
    A("v_lshlrev_b32 v16, 1, v16")
    A("v_and_b32 v17, 3, v0")
    A("v_xor_b32 v16, v16, v17")
    A("v_lshlrev_b32 v16, 4, v16")
    A("v_lshrrev_b32 v17, 2, v0")
    A("v_lshl_add_u32 v%d, v17, 13, v16" % V_WQ)
    A("v_lshrrev_b32 v16, 2, v%d" % V_N)
    A("v_and_b32 v17, 3, v%d" % V_N)
    A("v_lshl_add_u32 v16, v16, 3, v17")
    A("v_lshlrev_b32 v16, 13, v16")
    A("v_lshl_add_u32 v%d, v%d, 4, v16" % (V_UK0, V_G))
    A("v_add_u32 v%d, 0x8000, v%d" % (V_UK1, V_UK0))
    A("s_waitcnt lgkmcnt(0)")
    A.vmem("global_store_dwordx4 v%d, v[8:11], %s sc1" % (V_CL, sp(WS)), "clear")
    A.vmem("global_load_dwordx4 v[4:7], v%d, %s" % (V_XO, sp(X)), "x")
    A("s_lshl_b32 s%d, s%d, 8" % (S_T0, H))
    A("s_lshl_b32 s%d, s%d, 6" % (S_T1, S_W))
    A("s_add_u32 s%d, s%d, s%d" % (S_T1, S_T1, S_T0))
    srd(A, SRD0, WQ, 0x400000, [S_T1])
    A("s_lshl_b32 s%d, s%d, 20" % (S_T2, I))
    A("s_lshl_b32 s%d, s%d, 18" % (S_T3, S_W))
    A("s_add_u32 s%d, s%d, s%d" % (S_T2, S_T2, S_T3))
    A("s_add_u32 s%d, s%d, s%d" % (S_T2, S_T2, S_T0))
    srd(A, SRD1, WUK, 0x400000, [S_T2])
    A("s_lshl_b32 m0, s%d, 15" % S_W)
    A("s_lshl_b32 s%d, s%d, 20" % (S_OFF, I))
    state = {"n": 0}
    def dma_wq(srdreg, first=False):
        A.vmem("buffer_load_dwordx4 v%d, %s, s%d offen%s lds" % (V_WQ, sq(srdreg), S_OFF, cfg.nt), "wq%d" % state["n"])
        state["n"] += 1
        A("s_add_u32 m0, m0, 0x400")
        A("s_add_u32 s%d, s%d, 0x20000" % (S_OFF, S_OFF))
        if state["n"] % 2 == 0: A("s_and_b32 s%d, s%d, 0x3fffff" % (S_OFF, S_OFF))
    V_UKF = 12 + 8
    pre = cfg.depth
    for q in range(4): dma_wq(SRD0)
    for t in range(2):
        for ks in range(4):
            A.vmem("buffer_load_dwordx4 %s, v%d, %s, 0 offen offset:%d%s" % (vr(V_UKF + 16*t + 4*ks, 4), (V_UK0, V_UK1)[t], sq(SRD1), ks*64, cfg.nt), "uk")
    for q in range(4, pre): dma_wq(SRD0)
    A.vmwait("x")
    X0 = 52
    for d in range(4):
        A("v_lshlrev_b32 v%d, 16, v%d" % (X0 + 2*d, 4 + d))
        A("v_and_b32 v%d, 0xffff0000, v%d" % (X0 + 2*d + 1, 4 + d))
    A("v_add_f32 v60, v52, v53\nv_add_f32 v61, v54, v55\nv_add_f32 v62, v56, v57\nv_add_f32 v63, v58, v59")
    A("v_add_f32 v60, v60, v61\nv_add_f32 v62, v62, v63\nv_add_f32 v60, v60, v62")
    wave_allsum(A, 60, 61)
    A("v_mul_f32 v60, %s, v60" % f2u(1.0/512))
    for k in range(8): A("v_sub_f32 v%d, v%d, v60" % (X0 + k, X0 + k))
    A("v_mul_f32 v61, v52, v52")
    for k in range(1, 8): A("v_fmac_f32 v61, v%d, v%d" % (X0 + k, X0 + k))
    wave_allsum(A, 61, 62)
    A("v_mov_b32 v62, %s" % f2u(1e-5))
    A("v_fmac_f32 v62, %s, v61" % f2u(1.0/512))
    A("v_rsq_f32 v62, v62")
    A("s_nop 0")
    for k in range(8): A("v_mul_f32 v%d, v%d, v62" % (X0 + k, X0 + k))
    for d in range(4): A("v_cvt_pk_bf16_f32 v%d, v%d, v%d" % (4 + d, X0 + 2*d, X0 + 2*d + 1))
    A("s_lshl_b32 s%d, s%d, 11" % (S_T0, S_W))
    A("s_add_u32 s%d, s%d, %d" % (S_T0, S_T0, LW_LNX))
    A("v_add_u32 v16, s%d, v118" % S_T0)
    A("ds_write_b128 v16, v[4:7]")
    A("ds_write_b128 v16, v[4:7] offset:1024")
    A("v_lshrrev_b32 v17, 2, v%d" % V_N)
    A("v_lshlrev_b32 v17, 11, v17")
    A("v_lshl_add_u32 v17, v%d, 4, v17" % V_G)
    A("s_lshl_b32 s%d, s%d, 8" % (S_T0, I))
    A("s_add_u32 s%d, s%d, %d" % (S_T0, S_T0, LW_LNX))
    A("v_add_u32 v17, s%d, v17" % S_T0)
    A("s_waitcnt lgkmcnt(0)")
    A("s_barrier")
    A("s_cmp_lg_u32 s%d, 0" % S_W)
    A("s_cbranch_scc1 L_W_noat")
    A("s_and_b32 s%d, s%d, 3" % (S_T0, H))
    A("s_lshl_b32 s%d, s%d, 6" % (S_T0, S_T0))
    A("v_mov_b32 v16, s%d" % S_T0)
    A("v_mov_b32 v18, 1")
    A("s_mov_b64 exec, 1")
    A("global_atomic_add v16, v18, %s sc1" % sp(DBG))
    A("s_mov_b64 exec, -1")
    A.label("L_W_noat")
    V_AF = 52
    for n in range(16): A("ds_read_b128 %s, v17 offset:%d" % (vr(V_AF + 4*n, 4), n*64))
    V_T0, V_T1 = 120, 121
    A("v_lshrrev_b32 v16, 2, v%d" % V_N)
    A("v_lshl_add_u32 v16, v%d, 3, v16" % V_G)
    A("v_lshlrev_b32 v16, 6, v16")
    A("v_and_b32 v18, 1, v%d" % V_G)
    A("v_lshl_add_u32 v16, v18, 5, v16")
    A("v_and_b32 v18, 3, v%d" % V_N)
    A("v_lshl_add_u32 v16, v18, 3, v16")
    A("s_lshl_b32 s%d, s%d, 15" % (S_T0, S_W))
    A("v_add_u32 v%d, s%d, v16" % (V_T0, S_T0))
    A("v_xor_b32 v%d, 32, v%d" % (V_T1, V_T0))
    A("s_waitcnt lgkmcnt(0)")
    V_D = 122
    V_B = 132
    for n in range(16):
        A.vmwait("wq%d" % (2*n + 1))
        b = V_B + 8*(n & 1)
        for t in range(2):
            for s2 in range(2):
                A("ds_read_b64_tr_b16 %s, v%d offset:%d" % (vr(b + 4*t + 2*s2, 2), (V_T0, V_T1)[t], n*2048 + s2*256))
        while state["n"] < min(32, 2*n + 2 + pre): dma_wq(SRD0)
        A("s_waitcnt lgkmcnt(0)")
        for t in range(2):
            A("v_mfma_f32_16x16x32_bf16 %s, %s, %s, %s" % (vr(V_D + 4*t, 4), vr(V_AF + 4*n, 4), vr(b + 4*t, 4), vr(V_D + 4*t, 4) if n else "0"))
    A("s_lshl_b32 s%d, s%d, 8" % (S_T0, H))
    A("s_lshl_b32 s%d, s%d, 6" % (S_T1, S_W))
    A("s_add_u32 s%d, s%d, s%d" % (S_T1, S_T1, S_T0))
    srd(A, SRD0, WUV, 0x400000, [S_T1])
    A("s_lshl_b32 m0, s%d, 15" % S_W)
    A("s_lshl_b32 s%d, s%d, 20" % (S_OFF, I))
    A("s_lshl_b32 s%d, s%d, 6" % (S_T0, S_W))
    A("s_add_u32 s%d, s%d, %d" % (S_T0, S_T0, LW_QB))
    A("v_lshlrev_b32 v16, 8, v%d" % V_G)
    A("v_lshl_add_u32 v16, v%d, 1, v16" % V_N)
    A("v_add_u32 v16, s%d, v16" % S_T0)
    A("v_cvt_pk_bf16_f32 v130, v%d, v%d" % (V_D, V_D))
    A("v_cvt_pk_bf16_f32 v131, v%d, v%d" % (V_D + 4, V_D + 4))
    A("ds_write_b16 v16, v130")
    A("ds_write_b16 v16, v131 offset:32")
    A("v_and_b32 v17, 3, v%d" % V_N)
    A("v_lshlrev_b32 v17, 8, v17")
    A("v_lshl_add_u32 v17, v%d, 4, v17" % V_G)
    A("v_add_u32 v17, %d, v17" % LW_QB)
    A("s_lshl_b32 s%d, s%d, 10" % (S_T0, H))
    A("s_lshl_b32 s%d, s%d, 8" % (S_T1, I))
    A("s_add_u32 s%d, s%d, s%d" % (S_T0, S_T0, S_T1))
    A("s_lshl_b32 s%d, s%d, 6" % (S_T1, S_W))
    A("s_add_u32 s%d, s%d, s%d" % (S_T0, S_T0, S_T1))
    A("v_lshlrev_b32 v18, 15, v%d" % V_N)
    A("v_lshl_add_u32 v18, v%d, 4, v18" % V_G)
    A("v_add_u32 v18, s%d, v18" % S_T0)
    A("s_waitcnt lgkmcnt(0)")
    A("s_barrier")
    V_QF = 52
    for ks in range(4): A("ds_read_b128 %s, v17 offset:%d" % (vr(V_QF + 4*ks, 4), ks*64))
    state["n"] = 32
    for q in range(2*cfg.wpre): dma_wq(SRD0)
    A.vmwait("uk")
    A("s_waitcnt lgkmcnt(0)")
    for ks in range(4):
        for t in range(2):
            A("v_mfma_f32_16x16x32_bf16 %s, %s, %s, %s" % (vr(V_D + 4*t, 4), vr(V_UKF + 16*t + 4*ks, 4), vr(V_QF + 4*ks, 4), vr(V_D + 4*t, 4) if ks else "0"))
    A("s_mov_b32 s%d, %s" % (S_T0, f2u(QSCALE)))
    A("s_mov_b32 s%d, 0x000f000f" % S_M)
    A("s_mov_b32 s%d, 0x000f000f" % (S_M + 1))
    A.nop(6)
    for k in range(8): A("v_mul_f32 v%d, s%d, v%d" % (V_D + k, S_T0, V_D + k))
    for k in range(4): A("v_cvt_pk_bf16_f32 v%d, v%d, v%d" % (132 + k, V_D + 2*k, V_D + 2*k + 1))
    A("s_mov_b32 s%d, 0xfffefffe" % S_T1)
    for k in range(4): A("v_pk_min_u16 v%d, v%d, s%d" % (132 + k, 132 + k, S_T1))
    A("s_mov_b64 exec, %s" % sp(S_M))
    A.vmem("global_store_dwordx4 v18, v[132:135], %s sc1" % sp(WS), "qa")
    A("s_mov_b64 exec, -1")
    if cfg.stage <= 1:
        A("s_waitcnt vmcnt(0)")
        A("s_endpgm")
        return
    S_OFF2 = 60
    V_WO, V_I8 = 150, 152
    img256_src(A, V_WO)
    img256_rd(A, V_I8, V_G, V_N, 15)
    A("s_lshl_b32 s%d, s%d, 17" % (S_T0, H))
    A("s_lshl_b32 s%d, s%d, 8" % (S_T1, S_W))
    A("s_add_u32 s%d, s%d, s%d" % (S_T0, S_T0, S_T1))
    srd(A, SRD1, WO, 0x20000, [S_T0])
    A("s_lshl_b32 s%d, s%d, 15" % (S_OFF2, I))
    def issue(idx):
        if idx < 32:
            dma_wq(SRD0)
        else:
            q = idx - 32
            if q == 0:
                A("s_lshl_b32 m0, s%d, 15" % S_W)
                A("s_nop 0")
            A.vmem("buffer_load_dwordx4 v%d, %s, s%d offen%s lds" % (V_WO + ((q >> 1) & 1), sq(SRD1), S_OFF2, cfg.nt), "wo%d" % q)
            A("s_add_u32 m0, m0, 0x400")
            A("s_add_u32 s%d, s%d, 0x1000" % (S_OFF2, S_OFF2))
            A("s_and_b32 s%d, s%d, 0x1ffff" % (S_OFF2, S_OFF2))
    def mk(idx): return ("wq%d" % (32 + idx)) if idx < 32 else ("wo%d" % (idx - 32))
    issued = 2*cfg.wpre
    while issued < cfg.depth:
        issue(issued); issued += 1
    for e in range(1, 33):
        A.vmwait(mk(2*e - 1))
        if e <= 16:
            n = e - 1
            for t in range(2):
                for s2 in range(2):
                    A("ds_read_b64_tr_b16 %s, v%d offset:%d" % (ar(8*n + 4*t + 2*s2, 2), (V_T0, V_T1)[t], n*2048 + s2*256))
        elif e % 4 == 0:
            kk = (e - 20)//4
            for t in range(8):
                for s2 in range(2):
                    A("ds_read_b64_tr_b16 %s, v%d offset:%d" % (ar(128 + 32*kk + 4*t + 2*s2, 2), V_I8 + t, kk*8192 + s2*1024))
        tgt = min(64, 2*e + cfg.depth)
        if issued < tgt and issued >= 32 - 1:
            A("s_waitcnt lgkmcnt(0)")
        while issued < tgt:
            issue(issued); issued += 1
    V_ML, V_E, V_D8, V_TB = 160, 176, 192, 224
    A("s_lshl_b32 s%d, s%d, 5" % (S_T0, I))
    A("s_add_u32 s%d, s%d, s%d" % (S_T0, S_T0, H))
    A("s_lshl_b32 s%d, s%d, 8" % (S_T1, S_T0))
    A("s_add_u32 s%d, s%d, 0x%x" % (S_T1, S_T1, WS_ML))
    A("v_lshlrev_b32 v16, 6, v%d" % V_G)
    A("v_add_u32 v16, s%d, v16" % S_T1)
    A("s_lshl_b32 s%d, s%d, 15" % (S_T1, S_T0))
    A("s_lshl_b32 s%d, s%d, 8" % (S_T2, S_W))
    A("s_add_u32 s%d, s%d, s%d" % (S_T1, S_T1, S_T2))
    srd(A, SRD2, WS, 0x8000, [S_T1], WS_PART)
    A("s_lshl_b32 s%d, s%d, 10" % (S_T1, S_T0))
    A("s_add_u32 s%d, s%d, s%d" % (S_T1, S_T1, S_T2))
    A("s_add_u32 s%d, s%d, 0x%x" % (S_T1, S_T1, WS_OUTP))
    A("v_and_b32 v17, 1, v0")
    A("v_mul_u32_u24 v17, 126, v17")
    A("v_lshl_add_u32 v17, v0, 1, v17")
    A("v_add_u32 v149, s%d, v17" % S_T1)
    A("s_lshl_b32 s%d, s%d, 8" % (S_T1, S_W))
    A("s_add_u32 s%d, s%d, %d" % (S_T1, S_T1, LW_CTXC))
    A("v_lshlrev_b32 v17, 1, v0")
    A("v_add_u32 v148, s%d, v17" % S_T1)
    A("s_lshl_b32 s%d, s%d, 8" % (S_T1, I))
    A("s_add_u32 s%d, s%d, %d" % (S_T1, S_T1, LW_CTXC))
    A("v_lshlrev_b32 v17, 4, v%d" % V_G)
    A("v_add_u32 v147, s%d, v17" % S_T1)
    A("s_lshl_b32 s%d, s%d, 6" % (S_T1, I))
    A("s_add_u32 s%d, s%d, %d" % (S_T1, S_T1, LW_CTX))
    A("v_add_u32 v146, s%d, v17" % S_T1)
    A("s_lshl_b32 s%d, s%d, 6" % (S_T1, S_W))
    A("s_add_u32 s%d, s%d, %d" % (S_T1, S_T1, LW_CTX))
    A("v_and_b32 v17, 31, v0")
    A("v_lshlrev_b32 v17, 1, v17")
    A("v_add_u32 v145, s%d, v17" % S_T1)
    A("s_mov_b32 s%d, 0xaaaaaaaa" % S_M)
    A("s_mov_b32 s%d, 0xaaaaaaaa" % (S_M + 1))
    A("s_waitcnt lgkmcnt(0)")
    A.label("L_W_ml")
    for k in range(4): A("global_load_dwordx4 %s, v16, %s offset:%d sc1" % (vr(V_ML + 4*k, 4), sp(WS), 16*k))
    A("s_waitcnt vmcnt(0)")
    maxtree(A, V_ML, 16, dst=18)
    A("v_cmp_eq_u32 vcc, -1, v18")
    A("s_cbranch_vccz L_W_mlok")
    spin_guard(A, "L_fail")
    A("s_branch L_W_ml")
    A.label("L_W_mlok")
    A("s_lshl_b32 m0, s%d, 15" % S_W)
    A("s_mov_b32 s%d, 0" % S_OFF)
    for q in range(8):
        A("buffer_load_dwordx4 v%d, %s, s%d offen sc1 lds" % (V_WO + ((q >> 1) & 1), sq(SRD2), S_OFF))
        if q < 7:
            A("s_add_u32 m0, m0, 0x400")
            A("s_add_u32 s%d, s%d, 0x1000" % (S_OFF, S_OFF))
    m = lambda k: V_ML + 2*k
    l = lambda k: V_ML + 2*k + 1
    A("v_max3_f32 v18, v%d, v%d, v%d" % (m(0), m(1), m(2)))
    A("v_max3_f32 v18, v18, v%d, v%d" % (m(3), m(4)))
    A("v_max3_f32 v18, v18, v%d, v%d" % (m(5), m(6)))
    A("v_max_f32 v18, v18, v%d" % m(7))
    for sw in ("v_permlane16_swap_b32", "v_permlane32_swap_b32"):
        A("v_mov_b32 v19, v18\ns_nop 1\n%s v18, v19\nv_max_f32 v18, v18, v19" % sw)
    for k in range(8): A("v_sub_f32 v%d, v%d, v18" % (V_E + k, m(k)))
    for k in range(8): A("v_exp_f32 v%d, v%d" % (V_E + k, V_E + k))
    A("s_nop 0")
    A("v_mul_f32 v18, v%d, v%d" % (V_E, l(0)))
    for k in range(1, 8): A("v_fmac_f32 v18, v%d, v%d" % (V_E + k, l(k)))
    for k in range(4): A("v_cvt_pk_bf16_f32 v%d, v%d, v%d" % (V_E + 8 + k, V_E + 2*k, V_E + 2*k + 1))
    for sw in ("v_permlane16_swap_b32", "v_permlane32_swap_b32"):
        A("v_mov_b32 v19, v18\ns_nop 1\n%s v18, v19\nv_add_f32 v18, v18, v19" % sw)
    A("v_rcp_f32 v18, v18")
    A("s_waitcnt vmcnt(0)")
    for t in range(8):
        for s2 in range(2):
            A("ds_read_b64_tr_b16 %s, v%d offset:%d" % (vr(V_AFW + 4*t + 2*s2, 2), V_I8 + t, s2*1024))
    for t in range(8):
        A("s_waitcnt lgkmcnt(%d)" % (14 - 2*t))
        A("v_mfma_f32_16x16x32_bf16 %s, %s, %s, 0" % (vr(V_D8 + 4*t, 4), vr(V_E + 8, 4), vr(V_AFW + 4*t, 4)))
    A.nop(5)
    sel8(A, V_D8)
    for u in range(2):
        d = V_D8 + 16*u
        A("v_mul_f32 v%d, v%d, v18" % (d, d))
        A("v_cvt_pk_bf16_f32 v%d, v%d, v%d" % (d, d, d))
        A("ds_write_b16 v148, v%d offset:%d" % (d, 128*u))
        A("ds_write_b16 v148, v%d offset:%d" % (d, 128*u + 1024))
    A("s_waitcnt lgkmcnt(0)")
    A("s_barrier")
    for n in range(16): A("ds_read_b128 %s, v147 offset:%d" % (vr(V_AFW + 4*n, 4), n*64))
    for n in range(16):
        if n < 16: A("s_waitcnt lgkmcnt(%d)" % min(15, 15 - n))
        for t in range(2):
            A("v_mfma_f32_16x16x32_bf16 %s, %s, %s, %s" % (vr(V_D8 + 4*t, 4), vr(V_AFW + 4*n, 4), ar(8*n + 4*t, 4), vr(V_D8 + 4*t, 4) if n else "0"))
    A.nop(8)
    A("v_mov_b32_dpp v%d, v%d quad_perm:[0,1,2,3] row_mask:0xa bank_mask:0xf" % (V_D8, V_D8 + 4))
    A("v_cvt_pk_bf16_f32 v%d, v%d, v%d" % (V_D8, V_D8, V_D8))
    A("ds_write_b16 v145, v%d" % V_D8)
    A("ds_write_b16 v145, v%d offset:256" % V_D8)
    A("s_waitcnt lgkmcnt(0)")
    A("s_barrier")
    for kk in range(4): A("ds_read_b128 %s, v146 offset:%d" % (vr(V_AFW + 4*kk, 4), kk*64))
    for kk in range(4):
        A("s_waitcnt lgkmcnt(%d)" % (3 - kk))
        for t in range(8):
            A("v_mfma_f32_16x16x32_bf16 %s, %s, %s, %s" % (vr(V_D8 + 4*t, 4), vr(V_AFW + 4*kk, 4), ar(128 + 32*kk + 4*t, 4), vr(V_D8 + 4*t, 4) if kk else "0"))
    A.nop(8)
    sel8(A, V_D8)
    pack_pairs(A, V_D8, V_D8 + 16, 18, 19, S_M)
    A("global_store_dword v149, v18, %s sc1" % sp(WS))
    A("s_endpgm")

V_AFW = 52

def sel8(A, d):
    for k, msk in ((1, 2), (2, 4), (3, 8)):
        for u in range(2):
            A("v_mov_b32_dpp v%d, v%d quad_perm:[0,1,2,3] row_mask:0x%x bank_mask:0xf" % (d + 16*u, d + 16*u + 4*k, msk))

def pack_pairs(A, x0, x1, dst, tmp, smask):
    A("s_nop 0")
    A("v_mov_b32_dpp v%d, v%d quad_perm:[1,0,3,2] row_mask:0xf bank_mask:0xf" % (dst, x0))
    A("v_mov_b32_dpp v%d, v%d quad_perm:[1,0,3,2] row_mask:0xf bank_mask:0xf" % (tmp, x1))
    A("v_cndmask_b32 v%d, v%d, v%d, %s" % (tmp, x0, tmp, sp(smask)))
    A("v_cndmask_b32 v%d, v%d, v%d, %s" % (dst, dst, x1, sp(smask)))
    A("v_cvt_pk_bf16_f32 v%d, v%d, v%d" % (dst, tmp, dst))
    A("s_mov_b32 s%d, 0xfffefffe" % S_T0)
    A("v_pk_min_u16 v%d, v%d, s%d" % (dst, dst, S_T0))

def img256_src(A, v):
    A("v_lshrrev_b32 v16, 4, v0")
    A("v_bfe_u32 v17, v0, 1, 3")
    A("v_xor_b32 v17, v17, v16")
    A("v_lshlrev_b32 v17, 5, v17")
    A("v_lshl_add_u32 v17, v16, 10, v17")
    A("v_and_b32 v16, 1, v0")
    A("v_lshl_add_u32 v%d, v16, 4, v17" % v)
    A("v_xor_b32 v%d, 128, v%d" % (v + 1, v))

def img256_rd(A, v, vg, vn, wshift, base=0):
    A("v_lshrrev_b32 v16, 2, v%d" % vn)
    A("v_and_b32 v17, 1, v%d" % vg)
    A("v_lshl_or_b32 v17, v17, 2, v16")
    A("v_lshlrev_b32 v17, 5, v17")
    A("v_lshl_add_u32 v16, v%d, 3, v16" % vg)
    A("v_lshl_add_u32 v17, v16, 8, v17")
    A("v_and_b32 v16, 3, v%d" % vn)
    A("v_lshl_add_u32 v17, v16, 3, v17")
    A("s_lshl_b32 s%d, s%d, %d" % (S_T0, S_W, wshift))
    if base: A("s_add_u32 s%d, s%d, %d" % (S_T0, S_T0, base))
    A("v_add_u32 v%d, s%d, v17" % (v, S_T0))
    for t in range(1, 8): A("v_xor_b32 v%d, %d, v%d" % (v + t, t*32, v))

LA_R32 = 131072
LA_MAX = LA_R32
LA_SUM = LA_R32 + 512
LA_P = LA_R32 + 1024

def fswz(r): return ((r & 3) << 2) | ((r >> 2) & 3)

def role_A(A, cfg):
    B, J = S_A, S_B
    A.label("L_A")
    A.vmreset()
    A("s_sub_u32 s%d, s%d, 16" % (S_T0, S_SLOT))
    A("s_and_b32 s%d, s%d, 3" % (B, S_T0))
    A("s_lshr_b32 s%d, s%d, 2" % (S_T0, S_T0))
    A("s_lshl_b32 s%d, s%d, 3" % (S_T0, S_T0))
    A("s_add_u32 s%d, s%d, s%d" % (J, S_T0, S_XCD))
    A("v_lshlrev_b32 v4, 4, v0")
    V_CO = 8
    for r in range(16): A("v_xor_b32 v%d, %d, v4" % (V_CO + r, fswz(r)*16))
    A("s_lshl_b32 s%d, s%d, 22" % (S_T0, B))
    A("s_lshl_b32 s%d, s%d, 17" % (S_T1, J))
    A("s_add_u32 s%d, s%d, s%d" % (S_T0, S_T0, S_T1))
    A("s_lshl_b32 s%d, s%d, 15" % (S_T1, S_W))
    A("s_add_u32 s%d, s%d, s%d" % (S_T0, S_T0, S_T1))
    A("s_mov_b32 m0, s%d" % S_T1)
    A("s_mov_b32 s%d, 0" % S_OFF)
    A("v_and_b32 v24, 3, v0")
    A("v_lshlrev_b32 v24, 6, v24")
    A("s_waitcnt lgkmcnt(0)")
    srd(A, SRD0, CKV, 0x8000, [S_T0])
    for r in range(32):
        A.vmem("buffer_load_dwordx4 v%d, %s, s%d offen offset:%d%s lds" % (V_CO + (r & 15), sq(SRD0), S_OFF, (r & 3)*1024, cfg.nt), "ckv")
        if r % 4 == 3 and r != 31:
            A("s_add_u32 m0, m0, 0x1000")
            A("s_add_u32 s%d, s%d, 0x1000" % (S_OFF, S_OFF))
        if r == 23:
            A.vmem("global_load_dword v25, v24, %s sc1" % sp(DBG), "cnt")
    V_QK, V_PV, V_QD, V_RB = 26, 34, 50, 58
    A("v_and_b32 v5, 3, v0")
    A("v_lshlrev_b32 v5, 2, v5")
    A("v_bfe_u32 v6, v0, 2, 2")
    A("v_or_b32 v5, v5, v6")
    A("v_lshrrev_b32 v6, 5, v0")
    A("v_xor_b32 v5, v5, v6")
    A("v_lshlrev_b32 v5, 4, v5")
    A("v_and_b32 v7, 31, v0")
    A("v_lshl_add_u32 v5, v7, 10, v5")
    A("s_lshl_b32 s%d, s%d, 15" % (S_T0, S_W))
    A("v_add_u32 v%d, s%d, v5" % (V_QK, S_T0))
    for v in range(1, 8): A("v_xor_b32 v%d, %d, v%d" % (V_QK + v, v*32, V_QK))
    A("v_bfe_u32 v59, v0, 2, 2")
    A("v_lshlrev_b32 v60, 2, v6")
    A("v_add_u32 v60, v60, v59")
    A("v_lshlrev_b32 v60, 10, v60")
    A("v_bfe_u32 v61, v0, 4, 1")
    A("v_lshlrev_b32 v61, 1, v61")
    A("v_bfe_u32 v62, v0, 1, 1")
    A("v_or_b32 v61, v61, v62")
    A("v_xor_b32 v61, v61, v6")
    A("v_lshl_or_b32 v61, v59, 2, v61")
    A("v_lshl_add_u32 v60, v61, 4, v60")
    A("v_and_b32 v61, 1, v0")
    A("v_lshl_add_u32 v60, v61, 3, v60")
    A("s_lshl_b32 s%d, s%d, 8" % (S_T0, S_W))
    A("v_add_u32 v60, s%d, v60" % S_T0)
    for t in range(4):
        for s2 in range(2):
            k = V_PV + 4*t + 2*s2
            A("v_xor_b32 v%d, %d, v60" % (k, (t*64) ^ (s2*32)))
            A("v_add_u32 v%d, 0x10000, v%d" % (k + 1, k))
    A("s_lshl_b32 s%d, s%d, 1" % (S_T0, S_W))
    A("s_and_b32 s%d, s%d, 3" % (S_T1, S_T0))
    A("s_lshl_b32 s%d, s%d, 4" % (S_T1, S_T1))
    A("s_add_u32 s%d, s%d, 1" % (S_T0, S_T0))
    A("s_and_b32 s%d, s%d, 3" % (S_T0, S_T0))
    A("s_lshl_b32 s%d, s%d, 4" % (S_T0, S_T0))
    for r in range(8):
        A("v_xor_b32 v%d, %d, v4" % (V_QD + r, (r & 3) << 6))
        A("v_xor_b32 v%d, s%d, v%d" % (V_QD + r, (S_T1, S_T0)[r >> 2], V_QD + r))
    A("s_lshl_b32 s%d, s%d, 13" % (S_T0, S_W))
    A("s_add_u32 s%d, s%d, %d" % (S_T0, S_T0, LA_R32))
    A("v_add_u32 v%d, s%d, v4" % (V_RB, S_T0))
    A("s_mov_b32 s%d, s%d" % (S_T3, S_T0))
    A("s_lshl_b32 s%d, s%d, 15" % (S_T1, B))
    A("s_lshl_b32 s%d, s%d, 13" % (S_T2, S_W))
    A("s_add_u32 s%d, s%d, s%d" % (S_T1, S_T1, S_T2))
    srd(A, SRD1, WS, 0x2000, [S_T1], WS_QA)
    A.vmwait("ckv")
    for s in range(32):
        A("ds_read_b128 %s, v%d offset:%d" % (ar(4*s, 4), V_QK + (s & 7), (s >> 3)*256))
    A("s_lshl_b32 s%d, s%d, 15" % (S_T0, S_W))
    A("s_sub_u32 s%d, %d, s%d" % (S_T0, LA_R32, S_T0))
    A("s_waitcnt lgkmcnt(0)")
    for v in range(8): A("v_add_u32 v%d, s%d, v%d" % (V_QK + v, S_T0, V_QK + v))
    A.label("L_A_cnt")
    A("v_cmp_ne_u32 vcc, 32, v25")
    A("s_cbranch_vccz L_A_cntok")
    spin_guard(A, "L_fail")
    A("global_load_dword v25, v24, %s sc1" % sp(DBG))
    A("s_waitcnt vmcnt(0)")
    A("s_branch L_A_cnt")
    A.label("L_A_cntok")
    V_T = 60
    A.label("L_A_qa")
    A("s_mov_b32 m0, s%d" % S_T3)
    A("s_mov_b32 s%d, 0" % S_OFF)
    for r in range(8):
        A("buffer_load_dwordx4 v%d, %s, s%d offen offset:%d sc1 lds" % (V_QD + r, sq(SRD1), S_OFF, (r & 3)*1024))
        if r == 3:
            A("s_add_u32 m0, m0, 0x1000")
            A("s_mov_b32 s%d, 0x1000" % S_OFF)
    A("s_waitcnt vmcnt(0)")
    for r in range(8): A("ds_read_b128 %s, v%d offset:%d" % (vr(V_T + 4*r, 4), V_RB, r*1024))
    A("s_waitcnt lgkmcnt(0)")
    maxtree(A, V_T, 32)
    A("v_cmp_eq_u32 vcc, -1, v%d" % V_T)
    A("s_cbranch_vccz L_A_qaok")
    spin_guard(A, "L_fail")
    A("s_branch L_A_qa")
    A.label("L_A_qaok")
    A("s_barrier")
    V_S, V_BQ, NB = 96, 112, 6
    def rd(s): A("ds_read_b128 %s, v%d offset:%d" % (vr(V_BQ + 4*(s % NB), 4), V_QK + (s & 7), (s >> 3)*256))
    for s in range(NB - 1): rd(s)
    for s in range(32):
        if s + NB - 1 < 32: rd(s + NB - 1)
        A("s_waitcnt lgkmcnt(%d)" % min(NB - 1, 31 - s))
        A("v_mfma_f32_32x32x16_bf16 %s, %s, %s, %s" % (vr(V_S, 16), ar(4*s, 4), vr(V_BQ + 4*(s % NB), 4), vr(V_S, 16) if s else "0"))
    A("v_and_b32 v5, 31, v0")
    A("v_lshlrev_b32 v5, 4, v5")
    A("s_lshl_b32 s%d, s%d, 2" % (S_T0, S_W))
    A("s_add_u32 s%d, s%d, %d" % (S_T0, S_T0, LA_MAX))
    A("v_add_u32 v6, s%d, v5" % S_T0)
    A("v_add_u32 v5, %d, v5" % LA_MAX)
    A("s_lshl_b32 s%d, s%d, 11" % (S_T0, S_W))
    A("s_add_u32 s%d, s%d, %d" % (S_T0, S_T0, LA_P))
    A("v_add_u32 v7, s%d, v4" % S_T0)
    A("v_add_u32 v59, %d, v4" % LA_P)
    A.nop(3)
    A("v_max3_f32 v60, v%d, v%d, v%d" % (V_S, V_S + 1, V_S + 2))
    for k in range(3, 15, 2): A("v_max3_f32 v60, v60, v%d, v%d" % (V_S + k, V_S + k + 1))
    A("v_max_f32 v60, v60, v%d" % (V_S + 15))
    A("v_mov_b32 v61, v60")
    A("s_nop 1")
    A("v_permlane32_swap_b32 v60, v61")
    A("v_max_f32 v60, v60, v61")
    A("s_barrier")
    A("ds_write_b32 v6, v60")
    for k in range(16): A("v_sub_f32 v%d, v%d, v60" % (V_S + k, V_S + k))
    A("s_waitcnt lgkmcnt(0)")
    A("s_barrier")
    A("ds_read_b128 v[64:67], v5")
    for k in range(16): A("v_exp_f32 v%d, v%d" % (V_S + k, V_S + k))
    A("s_waitcnt lgkmcnt(0)")
    A("v_max3_f32 v62, v64, v65, v66")
    A("v_max_f32 v62, v62, v67")
    A("v_sub_f32 v63, v60, v62")
    A("v_exp_f32 v63, v63")
    A("s_nop 0")
    for k in range(16): A("v_mul_f32 v%d, v%d, v63" % (V_S + k, V_S + k))
    for k in range(8): A("v_cvt_pk_bf16_f32 v%d, v%d, v%d" % (68 + k, V_S + 2*k, V_S + 2*k + 1))
    A("ds_write_b128 v7, v[68:71]")
    A("ds_write_b128 v7, v[72:75] offset:1024")
    for k in range(8): A("v_add_f32 v%d, v%d, v%d" % (V_S + k, V_S + k, V_S + k + 8))
    for k in range(4): A("v_add_f32 v%d, v%d, v%d" % (V_S + k, V_S + k, V_S + k + 4))
    A("v_add_f32 v%d, v%d, v%d" % (V_S, V_S, V_S + 2))
    A("v_add_f32 v%d, v%d, v%d" % (V_S + 1, V_S + 1, V_S + 3))
    A("v_add_f32 v64, v%d, v%d" % (V_S, V_S + 1))
    A("v_mov_b32 v65, v64")
    A("s_nop 1")
    A("v_permlane32_swap_b32 v64, v65")
    A("v_add_f32 v64, v64, v65")
    A("ds_write_b32 v6, v64 offset:512")
    A("s_waitcnt lgkmcnt(0)")
    A("s_barrier")
    V_P = 136
    for s in range(8): A("ds_read_b128 %s, v59 offset:%d" % (vr(V_P + 4*s, 4), s*1024))
    A("ds_read_b128 v[64:67], v5 offset:512")
    A("s_lshl_b32 s%d, s%d, 20" % (S_T0, B))
    A("s_lshl_b32 s%d, s%d, 10" % (S_T1, J))
    A("s_add_u32 s%d, s%d, s%d" % (S_T0, S_T0, S_T1))
    A("s_lshl_b32 s%d, s%d, 8" % (S_T1, S_W))
    A("s_add_u32 s%d, s%d, s%d" % (S_T0, S_T0, S_T1))
    A("s_add_u32 s%d, s%d, 0x%x" % (S_T0, S_T0, WS_PART))
    A("v_and_b32 v60, 31, v0")
    A("v_lshlrev_b32 v61, 15, v60")
    A("v_lshrrev_b32 v63, 5, v0")
    A("v_lshl_add_u32 v61, v63, 4, v61")
    A("v_add_u32 v61, s%d, v61" % S_T0)
    A("s_lshl_b32 s%d, s%d, 13" % (S_T0, B))
    A("s_lshl_b32 s%d, s%d, 3" % (S_T1, J))
    A("s_add_u32 s%d, s%d, s%d" % (S_T0, S_T0, S_T1))
    A("s_add_u32 s%d, s%d, 0x%x" % (S_T0, S_T0, WS_ML))
    A("v_lshlrev_b32 v60, 8, v60")
    A("v_add_u32 v60, s%d, v60" % S_T0)
    V_O, V_TA, NT = 168, 200, 4
    seq = [(t, s) for t in range(4) for s in range(8)]
    def trd(i):
        t, s = seq[i]
        for s2 in range(2):
            A("ds_read_b64_tr_b16 %s, v%d offset:%d" % (vr(V_TA + 4*(i % NT) + 2*s2, 2), V_PV + 4*t + 2*s2 + (s >> 2), (s & 3)*16384 + s2*8192))
    def epi(t):
        d = V_O + 16*(t & 1); c = 216
        ops = []
        for k in range(8): ops.append("v_cvt_pk_bf16_f32 v%d, v%d, v%d" % (c + k, d + 2*k, d + 2*k + 1))
        ops.append("s_nop 1")
        for (a, b) in ((0, 2), (1, 3), (4, 6), (5, 7)): ops.append("v_permlane32_swap_b32 v%d, v%d" % (c + a, c + b))
        for q in range(2): ops.append("VM global_store_dwordx4 v61, %s, %s offset:%d sc1" % (vr(c + 4*q, 4), sp(WS), t*64 + q*32))
        return ops
    for i in range(NT - 1): trd(i)
    pend = []
    first = True
    for i, (t, s) in enumerate(seq):
        if i + NT - 1 < 32: trd(i + NT - 1)
        rem = min(NT - 1, 31 - i)
        A("s_waitcnt lgkmcnt(%d)" % (2*rem))
        d = V_O + 16*(t & 1)
        A("v_mfma_f32_32x32x16_bf16 %s, %s, %s, %s" % (vr(d, 16), vr(V_TA + 4*(i % NT), 4), vr(V_P + 4*s, 4), vr(d, 16) if s else "0"))
        if i == 0:
            A("v_add_f32 v64, v64, v65\nv_add_f32 v66, v66, v67\nv_add_f32 v63, v64, v66")
            A("v_min_u32 v62, -2, v62\nv_min_u32 v63, -2, v63")
        if s == 2 and t > 0: pend = epi(t - 1)
        for _ in range(4):
            if pend:
                o = pend.pop(0)
                if o.startswith("VM "): A.vmem(o[3:])
                else: A(o)
    A.nop(12)
    for o in epi(3):
        if o.startswith("VM "): A.vmem(o[3:])
        else: A(o)
    A("s_waitcnt vmcnt(0)")
    A("s_barrier")
    A("s_cmp_lg_u32 s%d, 0" % S_W)
    A("s_cbranch_scc1 L_A_noml")
    A("s_mov_b32 exec_hi, 0")
    A("global_store_dwordx2 v60, v[62:63], %s sc1" % sp(WS))
    A("s_mov_b32 exec_hi, -1")
    A.label("L_A_noml")
    if cfg.stage <= 3:
        A("s_waitcnt vmcnt(0)")
        A("s_endpgm")
        return
    A("s_barrier")
    A("s_cmp_ge_u32 s%d, 24" % J)
    A("s_cbranch_scc1 L_S7")
    A("s_cmp_ge_u32 s%d, 22" % J)
    A("s_cbranch_scc1 L_end")
    role_S6(A, cfg)
    role_S7(A, cfg)

def role_S6(A, cfg):
    B, J = S_A, S_B
    A.vmreset()
    V_G, V_N = 5, 6
    A("v_lshrrev_b32 v%d, 4, v0" % V_G)
    A("v_and_b32 v%d, 15, v0" % V_N)
    A("v_lshrrev_b32 v16, 3, v0")
    A("v_mul_u32_u24 v18, 2752, v16")
    A("v_bfe_u32 v16, v0, 4, 1")
    A("v_bfe_u32 v17, v0, 1, 2")
    A("v_xor_b32 v17, v17, v16")
    A("v_lshl_add_u32 v18, v17, 5, v18")
    A("v_and_b32 v16, 1, v0")
    A("v_lshl_add_u32 v8, v16, 4, v18")
    A("v_xor_b32 v17, 2, v17")
    A("v_lshrrev_b32 v16, 3, v0")
    A("v_mul_u32_u24 v18, 2752, v16")
    A("v_lshl_add_u32 v18, v17, 5, v18")
    A("v_and_b32 v16, 1, v0")
    A("v_lshl_add_u32 v9, v16, 4, v18")
    A("s_lshl_b32 s%d, s%d, 7" % (S_T0, J))
    A("s_sub_u32 s%d, %d, s%d" % (S_T1, 512*2752, S_T0))
    srd(A, SRD0, WG, 0, [S_T0]); A("s_mov_b32 s%d, s%d" % (SRD0 + 2, S_T1))
    srd(A, SRD1, WU, 0, [S_T0]); A("s_mov_b32 s%d, s%d" % (SRD1 + 2, S_T1))
    A("s_mul_i32 s%d, s%d, %d" % (S_T2, S_W, 128*2752))
    for mat in range(2):
        A("s_lshl_b32 m0, s%d, 14" % S_W)
        if mat: A("s_add_u32 m0, m0, 0x10000")
        A("s_mov_b32 s%d, s%d" % (S_OFF, S_T2))
        for q in range(16):
            A.vmem("buffer_load_dwordx4 v%d, %s, s%d offen%s lds" % (8 + (q & 1), sq((SRD0, SRD1)[mat]), S_OFF, cfg.nt), "w")
            if q < 15:
                A("s_add_u32 m0, m0, 0x400")
                A("s_add_u32 s%d, s%d, %d" % (S_OFF, S_OFF, 8*2752))
    A("s_lshl_b32 s%d, s%d, 10" % (S_T0, B))
    A("s_lshl_b32 s%d, s%d, 8" % (S_T1, S_W))
    A("s_add_u32 s%d, s%d, s%d" % (S_T0, S_T0, S_T1))
    A("v_lshlrev_b32 v10, 1, v0")
    A("v_add_u32 v10, s%d, v10" % S_T0)
    A.vmem("global_load_ushort v12, v10, %s" % sp(X), "x")
    A.vmem("global_load_ushort v13, v10, %s offset:128" % sp(X), "x")
    V_WO, V_I8 = 14, 20
    img256_src(A, V_WO)
    img256_rd(A, V_I8, V_G, V_N, 13, LA_R32)
    A("v_lshrrev_b32 v16, 2, v%d" % V_N)
    A("v_lshrrev_b32 v17, 1, v16")
    A("v_and_b32 v18, 1, v%d" % V_G)
    A("v_lshl_or_b32 v17, v18, 1, v17")
    A("v_xor_b32 v17, s%d, v17" % S_W)
    A("v_lshlrev_b32 v17, 5, v17")
    A("v_lshl_add_u32 v16, v%d, 3, v16" % V_G)
    A("v_lshl_add_u32 v17, v16, 7, v17")
    A("v_and_b32 v16, 3, v%d" % V_N)
    A("v_lshl_add_u32 v28, v16, 3, v17")
    A("v_add_u32 v29, 0x10000, v28")
    A("s_lshl_b32 s%d, s%d, 15" % (S_T0, B))
    A("s_lshl_b32 s%d, s%d, 8" % (S_T1, S_W))
    A("s_add_u32 s%d, s%d, s%d" % (S_T0, S_T0, S_T1))
    srd(A, SRD2, WS, 0x8000, [S_T0], WS_OUTP)
    A("s_lshl_b32 s%d, s%d, 13" % (S_T3, S_W))
    A("s_add_u32 s%d, s%d, %d" % (S_T3, S_T3, LA_R32))
    A("s_lshl_b32 s%d, s%d, 8" % (S_T0, S_W))
    A("v_lshlrev_b32 v16, 1, v0")
    A("v_add_u32 v30, s%d, v16" % S_T0)
    A("v_lshrrev_b32 v16, 3, v%d" % V_N)
    A("v_lshlrev_b32 v16, 10, v16")
    A("v_lshl_add_u32 v31, v%d, 4, v16" % V_G)
    A("s_mul_i32 s%d, s%d, %d" % (S_T0, B, HM_ROW))
    A("s_lshl_b32 s%d, s%d, 7" % (S_T1, J))
    A("s_add_u32 s%d, s%d, s%d" % (S_T0, S_T0, S_T1))
    A("s_lshl_b32 s%d, s%d, 5" % (S_T1, S_W))
    A("s_add_u32 s%d, s%d, s%d" % (S_T0, S_T0, S_T1))
    A("s_add_u32 s%d, s%d, 0x%x" % (S_T0, S_T0, WS_HMID))
    A("v_lshlrev_b32 v16, 1, v%d" % V_N)
    A("v_add_u32 v32, s%d, v16" % S_T0)
    A("v_mov_b32 v36, 0x3f803f80\nv_mov_b32 v37, 0x3f803f80\nv_mov_b32 v38, 0x3f803f80\nv_mov_b32 v39, 0x3f803f80")
    A("s_waitcnt vmcnt(0)")
    A("v_lshlrev_b32 v12, 16, v12")
    A("v_lshlrev_b32 v13, 16, v13")
    A("s_barrier")
    for mat in range(2):
        for ks in range(16):
            for s2 in range(2):
                A("ds_read_b64_tr_b16 %s, v%d offset:%d" % (ar(64*mat + 4*ks + 2*s2, 2), 28 + mat, ks*4096 + s2*512))
    A("s_waitcnt lgkmcnt(0)")
    A("s_barrier")
    A("s_lshl_b32 s%d, s%d, 8" % (S_T0, S_W))
    A("v_lshlrev_b32 v16, 2, v0")
    A("v_add_u32 v16, s%d, v16" % S_T0)
    A("ds_write_b32 v16, v36 offset:1024")
    V_F, V_D8 = 64, 96
    A.label("L_S6_g")
    A("s_mov_b32 m0, s%d" % S_T3)
    A("s_mov_b32 s%d, 0" % S_OFF)
    for q in range(8):
        A("buffer_load_dwordx4 v%d, %s, s%d offen sc1 lds" % (V_WO + ((q >> 1) & 1), sq(SRD2), S_OFF))
        if q < 7:
            A("s_add_u32 m0, m0, 0x400")
            A("s_add_u32 s%d, s%d, 0x1000" % (S_OFF, S_OFF))
    A("s_waitcnt vmcnt(0)")
    for t in range(8):
        for s2 in range(2):
            A("ds_read_b64_tr_b16 %s, v%d offset:%d" % (vr(V_F + 4*t + 2*s2, 2), V_I8 + t, s2*1024))
    for t in range(8):
        A("s_waitcnt lgkmcnt(%d)" % (14 - 2*t))
        A("v_mfma_f32_16x16x32_bf16 %s, v[36:39], %s, 0" % (vr(V_D8 + 4*t, 4), vr(V_F + 4*t, 4)))
        if t == 0:
            A("v_pk_max_u16 v33, v%d, v%d" % (V_F, V_F + 1))
            A("v_pk_max_u16 v34, v%d, v%d" % (V_F + 2, V_F + 3))
        else:
            for k in range(4): A("v_pk_max_u16 v%d, v%d, v%d" % (33 + (k & 1), 33 + (k & 1), V_F + 4*t + k))
    A("v_pk_max_u16 v33, v33, v34")
    A("v_lshlrev_b32 v34, 16, v33")
    A("v_max_u32 v33, v33, v34")
    A("v_cmp_le_u32 vcc, 0xffff0000, v33")
    A("s_cbranch_vccz L_S6_ok")
    spin_guard(A, "L_fail")
    A("s_branch L_S6_g")
    A.label("L_S6_ok")
    A.nop(3)
    sel8(A, V_D8)
    A("v_add_f32 v%d, v%d, v12" % (V_D8, V_D8))
    A("v_add_f32 v%d, v%d, v13" % (V_D8 + 16, V_D8 + 16))
    A("v_cvt_pk_bf16_f32 v%d, v%d, v%d" % (V_D8, V_D8, V_D8))
    A("v_cvt_pk_bf16_f32 v%d, v%d, v%d" % (V_D8 + 16, V_D8 + 16, V_D8 + 16))
    A("ds_write_b16 v30, v%d" % V_D8)
    A("ds_write_b16 v30, v%d offset:128" % (V_D8 + 16))
    A("s_waitcnt lgkmcnt(0)")
    A("s_barrier")
    V_AF = 128
    A("ds_read_b128 v[40:43], v4")
    for ks in range(16): A("ds_read_b128 %s, v31 offset:%d" % (vr(V_AF + 4*ks, 4), ks*64))
    st = []
    for d in range(4):
        st.append("v_lshlrev_b32 v%d, 16, v%d" % (44 + 2*d, 40 + d))
        st.append("v_and_b32 v%d, 0xffff0000, v%d" % (45 + 2*d, 40 + d))
    st += ["v_add_f32 v52, v44, v45", "v_add_f32 v53, v46, v47", "v_add_f32 v54, v48, v49", "v_add_f32 v55, v50, v51",
           "v_add_f32 v52, v52, v53", "v_add_f32 v54, v54, v55", "v_add_f32 v52, v52, v54"]
    T = Asm(); wave_allsum(T, 52, 53); st += T.lines
    st.append("v_mul_f32 v52, %s, v52" % f2u(1.0/512))
    for k in range(8): st.append("v_sub_f32 v%d, v%d, v52" % (44 + k, 44 + k))
    st.append("v_mul_f32 v54, v44, v44")
    for k in range(1, 8): st.append("v_fmac_f32 v54, v%d, v%d" % (44 + k, 44 + k))
    T = Asm(); wave_allsum(T, 54, 53); st += T.lines
    st += ["v_mov_b32 v55, %s" % f2u(1e-5), "v_fmac_f32 v55, %s, v54" % f2u(1.0/512), "v_rsq_f32 v55, v55"]
    DG, DU = 56, 60
    for ks in range(16):
        A("s_waitcnt lgkmcnt(%d)" % min(15, 15 - ks))
        for mat in range(2):
            d = (DG, DU)[mat]
            A("v_mfma_f32_16x16x32_bf16 %s, %s, %s, %s" % (vr(d, 4), vr(V_AF + 4*ks, 4), ar(64*mat + 4*ks, 4), vr(d, 4) if ks else "0"))
            for _ in range(2):
                if st: A(st.pop(0))
    for o in st: A(o)
    A.nop(8)
    for d in (DG, DU):
        A("v_mov_b32 v%d, v%d" % (d + 1, d))
    A("s_nop 1")
    for d in (DG, DU):
        A("v_permlane32_swap_b32 v%d, v%d" % (d, d + 1))
    for d in (DG, DU):
        A("v_fma_f32 v%d, -v52, v%d, v%d" % (d, d + 1, d))
    for d in (DG, DU):
        A("v_mul_f32 v%d, v%d, v55" % (d, d))
    A("v_max_f32 v%d, 0, v%d" % (DG, DG))
    A("v_mul_f32 v%d, v%d, v%d" % (DG, DG, DU))
    A("s_mov_b32 s%d, 0xfffefffe" % S_T0)
    A("s_nop 0")
    A("v_mov_b32_dpp v%d, v%d quad_perm:[1,0,3,2] row_mask:0xf bank_mask:0xf" % (DU, DG))
    A("v_cvt_pk_bf16_f32 v%d, v%d, v%d" % (DG, DG, DU))
    A("v_pk_min_u16 v%d, v%d, s%d" % (DG, DG, S_T0))
    A("s_mov_b64 exec, 0x5555")
    A("global_store_dword v32, v%d, %s sc1" % (DG, sp(WS)))
    A("s_endpgm")

def role_S7(A, cfg):
    B, J = S_A, S_B
    SL = 61
    A.label("L_S7")
    A.vmreset()
    V_G, V_N = 5, 6
    A("v_lshrrev_b32 v%d, 4, v0" % V_G)
    A("v_and_b32 v%d, 15, v0" % V_N)
    A("s_lshl_b32 s%d, s%d, 2" % (SL, S_XCD))
    A("s_add_u32 s%d, s%d, s%d" % (SL, SL, B))
    A("v_lshrrev_b32 v16, 1, v0")
    A("v_bfe_u32 v17, v0, 4, 1")
    A("v_lshlrev_b32 v17, 2, v17")
    A("v_xor_b32 v16, v16, v17")
    A("v_and_b32 v17, 1, v0")
    A("v_lshlrev_b32 v17, 4, v17")
    A("v_lshl_add_u32 v8, v16, 10, v17")
    A("s_lshl_b32 s%d, s%d, 5" % (S_T0, SL))
    A("s_sub_u32 s%d, %d, s%d" % (S_T1, 1376*1024, S_T0))
    srd(A, SRD0, WD, 0, [S_T0]); A("s_mov_b32 s%d, s%d" % (SRD0 + 2, S_T1))
    A("s_mul_i32 m0, s%d, 11264" % S_W)
    A("s_mul_i32 s%d, s%d, %d" % (S_OFF, S_W, 11*32768))
    for st in range(11):
        A.vmem("buffer_load_dwordx4 v8, %s, s%d offen%s lds" % (sq(SRD0), S_OFF, cfg.nt), "wd")
        if st < 10:
            A("s_add_u32 m0, m0, 0x400")
            A("s_add_u32 s%d, s%d, 0x8000" % (S_OFF, S_OFF))
    A("s_lshl_b32 s%d, s%d, 10" % (S_T0, S_W))
    A("s_lshl_b32 s%d, s%d, 5" % (S_T1, SL))
    A("s_add_u32 s%d, s%d, s%d" % (S_T0, S_T0, S_T1))
    A("v_and_b32 v16, 7, v0")
    A("v_lshlrev_b32 v16, 2, v16")
    A("v_add_u32 v10, s%d, v16" % S_T0)
    A.vmem("global_load_dword v12, v10, %s" % sp(X), "x")
    A("s_lshl_b32 s%d, s%d, 15" % (S_T0, S_W))
    A("s_add_u32 s%d, s%d, s%d" % (S_T0, S_T0, S_T1))
    A("s_add_u32 s%d, s%d, 0x%x" % (S_T0, S_T0, WS_OUTP))
    A("v_lshrrev_b32 v17, 3, v0")
    A("v_lshl_add_u32 v17, v17, 12, v16")
    A("v_add_u32 v11, s%d, v17" % S_T0)
    A("v_lshrrev_b32 v16, 2, v%d" % V_N)
    A("v_lshl_add_u32 v16, v%d, 3, v16" % V_G)
    A("v_and_b32 v17, 1, v%d" % V_G)
    A("v_lshlrev_b32 v17, 2, v17")
    A("v_xor_b32 v16, v16, v17")
    A("v_lshlrev_b32 v16, 5, v16")
    A("v_and_b32 v17, 3, v%d" % V_N)
    A("v_lshl_add_u32 v16, v17, 3, v16")
    A("s_mul_i32 s%d, s%d, 11264" % (S_T0, S_W))
    A("v_add_u32 v14, s%d, v16" % S_T0)
    A("v_xor_b32 v16, 128, v16")
    A("v_add_u32 v15, s%d, v16" % S_T0)
    A("v_lshrrev_b32 v16, 2, v%d" % V_N)
    A("v_mul_u32_u24 v16, %d, v16" % HM_ROW)
    A("v_lshl_add_u32 v16, v%d, 4, v16" % V_G)
    A("s_mul_i32 s%d, s%d, %d" % (S_T0, S_W, 11*64))
    A("s_add_u32 s%d, s%d, 0x%x" % (S_T0, S_T0, WS_HMID))
    A("v_add_u32 v18, s%d, v16" % S_T0)
    A("s_movk_i32 s%d, 640" % S_T1)
    A("s_cmp_eq_u32 s%d, 3" % S_W)
    A("s_cselect_b32 s%d, 576, s%d" % (S_T0, S_T1))
    A("v_add_u32 v19, s%d, v18" % S_T0)
    HR, RED = 49152, 49408
    A("s_lshl_b32 s%d, s%d, 6" % (S_T0, S_W))
    A("s_add_u32 s%d, s%d, %d" % (S_T0, S_T0, HR))
    A("v_and_b32 v16, 7, v0")
    A("v_lshlrev_b32 v16, 3, v16")
    A("v_add_u32 v20, s%d, v16" % S_T0)
    A("s_lshl_b32 s%d, s%d, 8" % (S_T0, S_W))
    A("s_add_u32 s%d, s%d, %d" % (S_T0, S_T0, RED))
    A("v_lshlrev_b32 v16, 2, v0")
    A("v_add_u32 v21, s%d, v16" % S_T0)
    A("v_add_u32 v22, %d, v16" % RED)
    A("v_add_u32 v23, %d, v16" % HR)
    A("s_lshl_b32 s%d, s%d, 5" % (S_T0, SL))
    A("v_lshlrev_b32 v16, 10, v%d" % V_G)
    A("v_lshl_add_u32 v16, v%d, 1, v16" % V_N)
    A("v_add_u32 v24, s%d, v16" % S_T0)
    A("s_waitcnt vmcnt(0)")
    for st in range(11):
        A("ds_read_b64_tr_b16 %s, v14 offset:%d" % (ar(4*st, 2), st*1024))
        A("ds_read_b64_tr_b16 %s, v15 offset:%d" % (ar(4*st + 2, 2), st*1024))
    A.label("L_S7_r")
    for r in range(4): A("global_load_dword v%d, v11, %s offset:%d sc1" % (26 + r, sp(WS), r*1024))
    A("s_waitcnt vmcnt(0)")
    maxtree(A, 26, 4, dst=30)
    A("v_cmp_eq_u32 vcc, -1, v30")
    A("s_cbranch_vccz L_S7_rok")
    spin_guard(A, "L_fail")
    A("s_branch L_S7_r")
    A.label("L_S7_rok")
    for r in range(4):
        A("v_lshlrev_b32 v%d, 16, v%d" % (32 + r, 26 + r))
        A("v_and_b32 v%d, 0xffff0000, v%d" % (36 + r, 26 + r))
    for base in (32, 36):
        A("v_add_f32 v%d, v%d, v%d" % (base, base, base + 1))
        A("v_add_f32 v%d, v%d, v%d" % (base + 2, base + 2, base + 3))
        A("v_add_f32 v%d, v%d, v%d" % (base, base, base + 2))
    A("s_nop 1")
    for base in (32, 36):
        A("v_add_f32_dpp v%d, v%d, v%d row_ror:8 row_mask:0xf bank_mask:0xf" % (base, base, base))
    for sw in ("v_permlane16_swap_b32", "v_permlane32_swap_b32"):
        A("v_mov_b32 v33, v32\nv_mov_b32 v37, v36\ns_nop 1")
        A("%s v32, v33\n%s v36, v37" % (sw, sw))
        A("v_add_f32 v32, v32, v33\nv_add_f32 v36, v36, v37")
    A("v_lshlrev_b32 v33, 16, v12")
    A("v_and_b32 v37, 0xffff0000, v12")
    A("v_add_f32 v32, v32, v33")
    A("v_add_f32 v33, v36, v37")
    A("ds_write_b64 v20, v[32:33]")
    V_AF = 64
    A.label("L_S7_g")
    for st in range(11):
        if st < 10: A("global_load_dwordx4 %s, v18, %s offset:%d sc1" % (vr(V_AF + 4*st, 4), sp(WS), st*64))
        else: A("global_load_dwordx4 %s, v19, %s sc1" % (vr(V_AF + 4*st, 4), sp(WS)))
    A("s_waitcnt vmcnt(0)")
    maxtree(A, V_AF, 44, dst=30)
    A("v_cmp_eq_u32 vcc, -1, v30")
    A("s_cbranch_vccz L_S7_gok")
    spin_guard(A, "L_fail")
    A("s_branch L_S7_g")
    A.label("L_S7_gok")
    A("s_waitcnt lgkmcnt(0)")
    for st in range(11):
        A("v_mfma_f32_16x16x32_bf16 v[40:43], %s, %s, %s" % (vr(V_AF + 4*st, 4), ar(4*st, 4), "v[40:43]" if st else "0"))
    A.nop(8)
    A("ds_write_b32 v21, v40")
    A("s_waitcnt lgkmcnt(0)")
    A("s_barrier")
    A("s_cmp_lg_u32 s%d, 0" % S_W)
    A("s_cbranch_scc1 L_end")
    for k in range(4): A("ds_read_b32 v%d, v22 offset:%d" % (44 + k, 256*k))
    A("ds_read_b32 v48, v23")
    A("s_waitcnt lgkmcnt(0)")
    A("v_add_f32 v44, v44, v45\nv_add_f32 v46, v46, v47\nv_add_f32 v44, v44, v48\nv_add_f32 v44, v44, v46")
    A("s_nop 1")
    A("v_mov_b32_dpp v45, v44 quad_perm:[1,0,3,2] row_mask:0xf bank_mask:0xf")
    A("v_cvt_pk_bf16_f32 v44, v44, v45")
    A("s_mov_b32 exec_lo, 0x55555555")
    A("s_mov_b32 exec_hi, 0x55555555")
    A("global_store_dword v24, v44, %s" % sp(OUT))
    A("s_endpgm")

def maxtree(A, base, n, dst=None):
    if dst is None: dst = base; cur = base; k = 1
    else:
        A("v_max3_u32 v%d, v%d, v%d, v%d" % (dst, base, base + 1, base + 2)); k = 3
    while k + 1 < n:
        A("v_max3_u32 v%d, v%d, v%d, v%d" % (dst, dst, base + k, base + k + 1)); k += 2
    if k < n: A("v_max_u32 v%d, v%d, v%d" % (dst, dst, base + k))

def build(cfg):
    A = Asm()
    prologue(A)
    role_W(A, cfg)
    role_A(A, cfg)
    A.label("L_fail")
    A("s_endpgm")
    A.label("L_end")
    A("s_endpgm")
    A.label("L_code_end")
    body = A.text()
    probs = check_hazards(body)
    for p in probs: print("HAZARD:", p, file=sys.stderr)
    head = open("cdna_kernels/" + KNAME[:-7] + ".s.ref").read().split("; Override launch geometry")[0]
    out = head + "; @launch grid=(256,1,1) block=(256,1,1) lds=163840\n"
    out += '.amdgcn_target "amdgcn-amd-amdhsa--gfx950"\n.text\n.globl %s\n.p2align 8\n.type %s,@function\n%s:\n' % (KNAME, KNAME, KNAME)
    out += body + "\n"
    out += """.section .rodata,"a"
.p2align 6
.amdhsa_kernel %s
  .amdhsa_next_free_vgpr 512
  .amdhsa_next_free_sgpr 102
  .amdhsa_accum_offset 256
  .amdhsa_group_segment_fixed_size 0
  .amdhsa_kernarg_size 104
  .amdhsa_user_sgpr_count 2
  .amdhsa_user_sgpr_kernarg_segment_ptr 1
  .amdhsa_system_sgpr_workgroup_id_x 1
  .amdhsa_float_denorm_mode_32 3
.end_amdhsa_kernel
""" % KNAME
    return out, probs

if __name__ == "__main__":
    cfg = Cfg()
    outp = "k.s"
    for a in sys.argv[1:]:
        if "=" in a:
            k, v = a.split("=", 1)
            if k == "out": outp = v
            else: setattr(cfg, k, type(getattr(cfg, k))(v))
    txt, probs = build(cfg)
    open(outp, "w").write(txt)
    print("wrote", outp, len(txt), "bytes;", len(probs), "hazards")
```

```python
import re

class Asm:
    def __init__(self):
        self.lines = []
        self.vm = 0
        self.marks = {}
    def __call__(self, s):
        for l in s.split("\n"):
            l = l.strip()
            if l: self.lines.append(l)
    def c(self, s): self.lines.append("; " + s)
    def label(self, name): self.lines.append(name + ":")
    def vmem(self, s, mark=None):
        self(s); self.vm += 1
        if mark is not None: self.marks[mark] = self.vm
    def mark(self, name): self.marks[name] = self.vm
    def vmwait(self, mark):
        n = self.vm - self.marks[mark]
        assert 0 <= n <= 63, (mark, n)
        self("s_waitcnt vmcnt(%d)" % n)
    def vmreset(self): self.vm = 0; self.marks = {}
    def nop(self, n):
        while n > 0:
            k = min(n, 16); self("s_nop %d" % (k-1)); n -= k
    def text(self): return "\n".join(("    " + l if not l.endswith(":") else l) for l in self.lines)

REG = re.compile(r"\b([vas])\[(\d+):(\d+)\]|\b([vas])(\d+)\b")
def regs_of(op):
    out = []
    for m in REG.finditer(op):
        if m.group(1): out += [(m.group(1), i) for i in range(int(m.group(2)), int(m.group(3))+1)]
        else: out.append((m.group(4), int(m.group(5))))
    if re.search(r"\bvcc\b", op): out += [("s", 106), ("s", 107)]
    if re.search(r"\bexec\b", op): out += [("s", 126), ("s", 127)]
    if re.search(r"\bm0\b", op): out.append(("s", 124))
    return out

TRANS = ("v_exp_f32","v_log_f32","v_rcp_f32","v_rsq_f32","v_sqrt_f32","v_sin_f32","v_cos_f32")
class I:
    pass
def parse(line):
    s = line.split(";")[0].strip()
    if not s or s.endswith(":") or s.startswith("."): return None
    parts = s.split(None, 1)
    ins = I(); ins.text = s; ins.op = parts[0]
    ops = [o.strip() for o in parts[1].split(",")] if len(parts) > 1 else []
    ins.ops = ops
    op = ins.op
    ins.kind = "other"; ins.w = []; ins.r = []
    ins.slots = 1
    if op == "s_nop": ins.slots = int(ops[0]) + 1; ins.kind = "nop"; return ins
    allr = lambda lst: [r for o in lst for r in regs_of(o)]
    if op.startswith("v_mfma") or op.startswith("v_smfmac"):
        ins.kind = "mfma"; ins.w = regs_of(ops[0]); ins.ra = regs_of(ops[1]); ins.rb = regs_of(ops[2]); ins.rc = regs_of(ops[3])
        if op.startswith("v_smfmac"): ins.rc = regs_of(ops[0]) ; ins.rb += regs_of(ops[3])
        ins.r = ins.ra + ins.rb + ins.rc
        ins.passes = 8 if "32x32" in op else 4
    elif op.startswith("v_cmp"):
        ins.kind = "valu"; ins.w = regs_of(ops[0]); ins.r = allr(ops[1:])
        if op.startswith("v_cmpx"): ins.w += [("s",126),("s",127)]
    elif op.startswith("v_readlane") or op.startswith("v_readfirstlane"):
        ins.kind = "valu"; ins.w = regs_of(ops[0]); ins.r = allr(ops[1:]); ins.lane = True
    elif op.startswith("v_permlane"):
        ins.kind = "valu"; ins.w = allr(ops[:2]); ins.r = allr(ops[:2]); ins.perm = True
    elif op.startswith("v_"):
        ins.kind = "valu"; ins.w = regs_of(ops[0]); ins.r = allr(ops[1:])
        if op.startswith(("v_fmac","v_dot2c","v_pk_fmac")): ins.r += ins.w
        if op.startswith(("v_add_co","v_sub_co","v_addc_co","v_subb_co")): ins.w += regs_of(ops[1]); ins.r = allr(ops[2:])
        if op.startswith("v_cndmask") and len(ops) == 3: ins.r += [("s",106),("s",107)]
        if "dpp" in s or "quad_perm" in s or "row_" in s: ins.dpp = True
        if op.split("_e")[0] in TRANS or op in TRANS: ins.trans = True
    elif op.startswith("ds_"):
        ins.kind = "ds"
        if op.startswith(("ds_read","ds_bpermute","ds_permute","ds_swizzle")): ins.w = regs_of(ops[0]); ins.r = allr(ops[1:])
        else: ins.r = allr(ops)
    elif op.startswith(("buffer_","global_")):
        ins.kind = "vmem"
        if "load" in op and " lds" not in s and "load_lds" not in op: ins.w = regs_of(ops[0]); ins.r = allr(ops[1:])
        else: ins.r = allr(ops)
        if " lds" in s or "load_lds" in op: ins.r.append(("s",124)); ins.dma = True
        if "store" in op and ("x4" in op or "x3" in op):
            ins.widestore = regs_of(ops[1]) if op.startswith("global") else regs_of(ops[0])
    elif op.startswith("s_"):
        ins.kind = "salu"
        if op.startswith(("s_cmp","s_cbranch","s_branch","s_waitcnt","s_barrier","s_endpgm","s_sleep","s_setprio","s_bitcmp")): ins.r = allr(ops)
        else: ins.w = regs_of(ops[0]) if ops else []; ins.r = allr(ops[1:])
        if "saveexec" in op: ins.w += [("s",126),("s",127)]
    return ins

def check_hazards(text):
    ins = [i for i in (parse(l) for l in text.split("\n")) if i]
    probs = []
    isv = lambda r: r[0] in "va"
    tt = []; t = 0; lastm = None
    for k, x in enumerate(ins):
        if x.kind == "mfma" and lastm is not None: t = max(t, tt[lastm] + ins[lastm].passes)
        tt.append(t)
        if x.kind == "mfma": lastm = k
        t += x.slots
    for n, cur in enumerate(ins):
        dist = 0
        for p in range(n-1, max(-1, n-40), -1):
            prev = ins[p]
            def need(k, why):
                if dist < k: probs.append("%s: need %d have %d: [%s] -> [%s]" % (why, k, dist, prev.text, cur.text))
            pw = set(prev.w); cr = set(cur.r); cw = set(cur.w)
            if prev.kind == "valu":
                vw = {r for r in pw if isv(r)}; sw = {r for r in pw if r[0] == "s"}
                if cur.kind == "mfma" and vw & cr: need(2, "valu->mfma")
                if cur.kind == "valu" and getattr(cur,"dpp",False) and vw & cr: need(2, "valu->dpp")
                if cur.kind == "valu" and getattr(cur,"perm",False) and vw & cr: need(2, "valu->permlane")
                if cur.kind == "valu" and getattr(cur,"lane",False) and vw & cr: need(1, "valu->readlane")
                if getattr(prev,"trans",False) and cur.kind in ("valu","mfma") and vw & cr and not getattr(cur,"trans",False): need(1, "trans->valu")
                if cur.kind == "vmem" and sw & cr: need(5, "valu sgpr->vmem")
                if cur.kind == "valu" and sw & cr: need(2, "valu sgpr->valu")
                if cur.kind == "valu" and getattr(cur,"dpp",False) and (("s",126) in sw): need(5, "valu exec->dpp")
                if cur.kind == "mfma" and (("s",126) in sw): need(4, "valu exec->mfma")
            if prev.kind == "mfma":
                dist_s = dist; dist = max(dist, tt[n] - tt[p] - 1)
                d = set(prev.w)
                k = 8 if prev.passes == 4 else 12
                if cur.kind == "mfma":
                    if d & (set(cur.ra) | set(cur.rb)): need(k, "mfma D->A/B")
                    if d & set(cur.rc) and (set(cur.rc) != d): need(k-2, "mfma D->C overlap")
                    if d & cw and not (set(cur.rc) == d and cw == d) : need(k-2, "mfma D->D overlap WAW")
                elif cur.kind in ("valu","ds","vmem") and d & (cr | cw): need(k, "mfma D->valu/mem")
                if cur.kind == "valu" and set(prev.rc) & cw: need(3 if prev.passes == 4 else 7, "mfma C WAR")
                dist = dist_s
            if prev.kind == "salu" and ("s",124) in pw and getattr(cur,"dma",False): need(1, "m0->dma")
            if prev.kind == "vmem" and hasattr(prev,"widestore") and cur.kind == "valu" and set(prev.widestore) & cw: need(2, "wide store WAR")
            if prev.kind == "salu" and (("s",126) in pw) and cur.kind == "valu" and getattr(cur,"dpp",False): need(0, "salu exec->dpp")
            dist += prev.slots
            if dist > 20: break
    return probs
```

```python
import sys
from asmlib import Asm, check_hazards

KNAME = "sequential_preLN__compressed_kv_cla__glu_gated_reglu__decode_kernel"

WS_QA   = 0x000000
WS_ML   = 0x020000
WS_OUTP = 0x030000
WS_HMID = 0x050000
WS_PART = 0x100000
HM_ROW = 2816

X, CKV, WQ, WUK, WUV, WO, BX, WG, WU, WD, OUT, DBG, WS = [4 + 2*i for i in range(13)]
S_XCD, S_SLOT, S_W = 30, 31, 33
S_PC = 34
SRD0, SRD1, SRD2 = 36, 40, 44
S_A, S_B = 48, 49
S_OFF = 50
S_T0, S_T1, S_T2, S_T3 = 51, 52, 53, 54
S_SPIN = 55
S_M = 56
S_M2 = 58
SPIN_MAX = 1 << 18

def sp(r): return "s[%d:%d]" % (r, r+1)
def sq(r): return "s[%d:%d]" % (r, r+3)
def vr(r, n): return "v[%d:%d]" % (r, r+n-1) if n > 1 else "v%d" % r
def ar(r, n): return "a[%d:%d]" % (r, r+n-1) if n > 1 else "a%d" % r

QSCALE = (128 ** -0.5) * 1.4426950408889634
import struct
def f2u(x): return "0x%08x" % struct.unpack("<I", struct.pack("<f", x))[0]

WS_STAMP = 0x700000
def stamp(A, cfg, k):
    if not cfg.prof: return
    if cfg.prof == 2 and k not in cfg.keep: return
    if cfg.prof == 3 and k not in cfg.keep3: return
    if cfg.prof == 4 and k not in (0, 12): return
    A("s_memrealtime s[62:63]")
    A("s_waitcnt lgkmcnt(0)")
    A("v_writelane_b32 v255, s62, %d" % k)
def stamp_flush(A, cfg):
    if not cfg.prof: return
    A("s_mov_b64 exec, -1")
    A("s_lshl_b32 s62, s2, 2")
    A("s_add_u32 s62, s62, s%d" % S_W)
    A("s_lshl_b32 s62, s62, 8")
    A("s_add_u32 s62, s62, 0x%x" % WS_STAMP)
    A("v_lshlrev_b32 v254, 2, v0")
    A("v_add_u32 v254, s62, v254")
    A("global_store_dword v254, v255, %s" % sp(WS))

class Cfg:
    prof = 0
    qstage = 1
    lnstep = 12
    touch = 0
    gwait = 0
    sl_gw = 6
    epi_at = 2
    epi_n = 4
    keep = (0, 3, 5, 7, 9, 10, 12)
    keep3 = (0, 1, 2, 3, 4, 5, 6, 7, 8, 9, 10, 11, 12)
    atwait = 1
    ukpos = -1
    codepf = 1
    pv_nt = 8
    wfirst = 4
    wsecond = 12
    x_noclear = 0
    x_await = 0
    alate = 1
    astage = 0
    akeep = 0
    sl_cnt = 16
    sl_qa = 2
    sl_ml = 2
    sl_out = 2
    sl_res = 8
    sl_hm = 2
    stage = 99
    nt_ckv = " nt"
    nt_wq = ""
    nt_uk = ""
    nt_uv = ""
    nt_wo = ""
    nt_ffn = ""
    nt_wd = ""
    direct_part = 0
    wpre = 0
    depth = 12

def srd(A, dst, ptr, size, add_sregs=(), add_const=0):
    A("s_mov_b32 s%d, s%d" % (dst, ptr))
    A("s_mov_b32 s%d, s%d" % (dst+1, ptr+1))
    for r in add_sregs:
        A("s_add_u32 s%d, s%d, s%d" % (dst, dst, r))
        A("s_addc_u32 s%d, s%d, 0" % (dst+1, dst+1))
    if add_const:
        A("s_add_u32 s%d, s%d, 0x%x" % (dst, dst, add_const))
        A("s_addc_u32 s%d, s%d, 0" % (dst+1, dst+1))
    A("s_mov_b32 s%d, 0x%x" % (dst+2, size))
    A("s_mov_b32 s%d, 0x20000" % (dst+3))

def wave_allsum(A, v, t):
    for p in ("quad_perm:[1,0,3,2]", "quad_perm:[2,3,0,1]", "row_half_mirror", "row_mirror"):
        A("s_nop 1")
        A("v_add_f32_dpp v%d, v%d, v%d %s row_mask:0xf bank_mask:0xf" % (v, v, v, p))
    for sw in ("v_permlane16_swap_b32", "v_permlane32_swap_b32"):
        A("v_mov_b32 v%d, v%d" % (t, v))
        A("s_nop 1")
        A("%s v%d, v%d" % (sw, v, t))
        A("v_add_f32 v%d, v%d, v%d" % (v, v, t))

def allsum2(A, a, b, ta, tb):
    for p in ("quad_perm:[1,0,3,2]", "quad_perm:[2,3,0,1]", "row_half_mirror", "row_mirror"):
        A("s_nop 0")
        A("v_add_f32_dpp v%d, v%d, v%d %s row_mask:0xf bank_mask:0xf" % (a, a, a, p))
        A("v_add_f32_dpp v%d, v%d, v%d %s row_mask:0xf bank_mask:0xf" % (b, b, b, p))
    for sw in ("v_permlane16_swap_b32", "v_permlane32_swap_b32"):
        A("v_mov_b32 v%d, v%d" % (ta, a))
        A("v_mov_b32 v%d, v%d" % (tb, b))
        A("s_nop 0")
        A("%s v%d, v%d" % (sw, a, ta))
        A("%s v%d, v%d" % (sw, b, tb))
        A("v_add_f32 v%d, v%d, v%d" % (a, a, ta))
        A("v_add_f32 v%d, v%d, v%d" % (b, b, tb))

def spin_guard(A, lbl_fail, sleep=0):
    if sleep: A("s_sleep %d" % sleep)
    A("s_add_u32 s%d, s%d, 1" % (S_SPIN, S_SPIN))
    A("s_cmp_gt_u32 s%d, 0x%x" % (S_SPIN, SPIN_MAX))
    A("s_cbranch_scc1 %s" % lbl_fail)

def prologue(A):
    A("s_cmp_ge_u32 s2, 0x100")
    A("s_cbranch_scc1 L_end")
    A("s_load_dwordx16 s[4:19], s[0:1], 0x0")
    A("s_load_dwordx8 s[20:27], s[0:1], 0x40")
    A("s_load_dwordx2 s[28:29], s[0:1], 0x60")
    A("s_getpc_b64 %s" % sp(S_PC))
    A.label("L_pc")
    A("v_lshrrev_b32 v1, 6, v0")
    A("v_and_b32 v0, 63, v0")
    A("s_and_b32 s%d, s2, 7" % S_XCD)
    A("s_lshr_b32 s%d, s2, 3" % S_SLOT)
    A("v_readfirstlane_b32 s%d, v1" % S_W)
    A("s_mov_b32 s%d, 0" % S_SPIN)
    A("s_cmp_ge_u32 s%d, 16" % S_SLOT)
    A("s_cbranch_scc1 L_A")

LW_IMG = 0
LW_LNX = 131072
LW_QB  = 139264
LW_CTXC = 140288
LW_CTX = 142336
LW_QS = 143360
LW_E = 144384

def role_W(A, cfg):
    H, I = S_A, S_B
    A.label("L_W")
    A.vmreset()
    stamp(A, cfg, 0)
    A("s_lshr_b32 s%d, s%d, 2" % (S_T0, S_SLOT))
    A("s_lshl_b32 s%d, s%d, 2" % (H, S_XCD))
    A("s_add_u32 s%d, s%d, s%d" % (H, H, S_T0))
    A("s_and_b32 s%d, s%d, 3" % (I, S_SLOT))
    V_G, V_N = 116, 117
    V_XO, V_WQ, V_UK0, V_UK1 = 13, 119, 14, 15
    A("v_lshlrev_b32 v118, 4, v0")
    A("s_lshl_b32 s%d, s%d, 10" % (S_T1, S_W))
    A("v_add_u32 v%d, s%d, v118" % (V_XO, S_T1))
    A("v_lshrrev_b32 v16, 5, v0")
    A("v_lshlrev_b32 v16, 1, v16")
    A("v_and_b32 v17, 3, v0")
    A("v_xor_b32 v16, v16, v17")
    A("v_lshlrev_b32 v16, 4, v16")
    A("v_lshrrev_b32 v17, 2, v0")
    A("v_lshl_add_u32 v%d, v17, 13, v16" % V_WQ)
    A("s_lshl_b32 s%d, s%d, 8" % (S_T0, H))
    A("s_lshl_b32 s%d, s%d, 6" % (S_T1, S_W))
    A("s_add_u32 s%d, s%d, s%d" % (S_T1, S_T1, S_T0))
    A("s_lshl_b32 m0, s%d, 15" % S_W)
    A("s_lshl_b32 s%d, s%d, 20" % (S_OFF, I))
    A("s_waitcnt lgkmcnt(0)")
    stamp(A, cfg, 16)
    A.vmem("global_load_dwordx4 v[4:7], v%d, %s" % (V_XO, sp(X)), "x")
    srd(A, SRD0, WQ, 0x400000, [S_T1])
    state = {"n": 0}
    def dma_wq(srdreg, first=False):
        A.vmem("buffer_load_dwordx4 v%d, %s, s%d offen%s lds" % (V_WQ, sq(srdreg), S_OFF, cfg.nt_wq if state["n"] < 32 else cfg.nt_uv), "wq%d" % state["n"])
        state["n"] += 1
        A("s_add_u32 m0, m0, 0x400")
        A("s_add_u32 s%d, s%d, 0x20000" % (S_OFF, S_OFF))
        if state["n"] % 2 == 0: A("s_and_b32 s%d, s%d, 0x3fffff" % (S_OFF, S_OFF))
    V_UKF = 12 + 8
    pre = cfg.depth
    for q in range(cfg.wfirst): dma_wq(SRD0)
    stamp(A, cfg, 17)
    A("v_lshrrev_b32 v%d, 4, v0" % V_G)
    A("v_and_b32 v%d, 15, v0" % V_N)
    A("v_lshrrev_b32 v16, 2, v%d" % V_N)
    A("v_and_b32 v17, 3, v%d" % V_N)
    A("v_lshl_add_u32 v16, v16, 3, v17")
    A("v_lshlrev_b32 v16, 13, v16")
    A("v_lshl_add_u32 v%d, v%d, 4, v16" % (V_UK0, V_G))
    A("v_add_u32 v%d, 0x8000, v%d" % (V_UK1, V_UK0))
    A("s_lshl_b32 s%d, s%d, 20" % (S_T2, I))
    A("s_lshl_b32 s%d, s%d, 18" % (S_T3, S_W))
    A("s_add_u32 s%d, s%d, s%d" % (S_T2, S_T2, S_T3))
    A("s_add_u32 s%d, s%d, s%d" % (S_T2, S_T2, S_T0))
    srd(A, SRD1, WUK, 0x400000, [S_T2])
    def uk_loads():
        for t in range(2):
            for ks in range(4):
                A.vmem("buffer_load_dwordx4 %s, v%d, %s, 0 offen offset:%d%s" % (vr(V_UKF + 16*t + 4*ks, 4), (V_UK0, V_UK1)[t], sq(SRD1), ks*64, cfg.nt_uk), "uk")
    if cfg.ukpos == -1: uk_loads()
    stamp(A, cfg, 18)
    A("s_lshl_b32 s%d, s%d, 10" % (S_T1, H))
    A("s_lshl_b32 s%d, s%d, 8" % (S_T2, I))
    A("s_add_u32 s%d, s%d, s%d" % (S_T1, S_T1, S_T2))
    A("v_lshlrev_b32 v12, 4, v%d" % V_N)
    A("v_lshl_add_u32 v12, v%d, 15, v12" % V_G)
    A("v_add_u32 v12, s%d, v12" % S_T1)
    A("v_and_b32 v164, 1, v0")
    A("v_lshlrev_b32 v164, 7, v164")
    stamp(A, cfg, 19)
    V_LW, V_LR, V_QW, V_QR, V_QS = 8, 9, 10, 11, 18
    V_T0, V_T1 = 120, 121
    A("s_lshl_b32 s%d, s%d, 11" % (S_T0, S_W))
    A("s_add_u32 s%d, s%d, %d" % (S_T0, S_T0, LW_LNX))
    A("v_add_u32 v%d, s%d, v118" % (V_LW, S_T0))
    A("v_lshrrev_b32 v16, 2, v%d" % V_N)
    A("v_lshlrev_b32 v17, 11, v16")
    A("v_lshl_add_u32 v17, v%d, 4, v17" % V_G)
    A("s_lshl_b32 s%d, s%d, 8" % (S_T0, I))
    A("s_add_u32 s%d, s%d, %d" % (S_T0, S_T0, LW_LNX))
    A("v_add_u32 v%d, s%d, v17" % (V_LR, S_T0))
    A("v_lshl_add_u32 v16, v%d, 3, v16" % V_G)
    A("v_lshlrev_b32 v16, 6, v16")
    A("v_and_b32 v17, 1, v%d" % V_G)
    A("v_lshl_add_u32 v16, v17, 5, v16")
    A("v_and_b32 v17, 3, v%d" % V_N)
    A("v_lshl_add_u32 v16, v17, 3, v16")
    A("s_lshl_b32 s%d, s%d, 15" % (S_T0, S_W))
    A("v_add_u32 v%d, s%d, v16" % (V_T0, S_T0))
    A("v_xor_b32 v%d, 32, v%d" % (V_T1, V_T0))
    A("s_lshl_b32 s%d, s%d, 6" % (S_T0, S_W))
    A("s_add_u32 s%d, s%d, %d" % (S_T1, S_T0, LW_QB))
    A("v_lshlrev_b32 v16, 8, v%d" % V_G)
    A("v_lshl_add_u32 v16, v%d, 1, v16" % V_N)
    A("v_add_u32 v%d, s%d, v16" % (V_QW, S_T1))
    A("v_lshlrev_b32 v17, 8, v17")
    A("v_lshl_add_u32 v17, v%d, 4, v17" % V_G)
    A("v_add_u32 v%d, %d, v17" % (V_QR, LW_QB))
    if cfg.qstage:
        A("s_add_u32 s%d, s%d, %d" % (S_T1, S_T0, LW_QS))
        A("v_lshlrev_b32 v16, 8, v%d" % V_N)
        A("v_lshl_add_u32 v16, v%d, 4, v16" % V_G)
        A("v_add_u32 v%d, s%d, v16" % (V_QS, S_T1))
        A("v_add_u32 v19, %d, v118" % LW_QS)
    else:
        A("s_lshl_b32 s%d, s%d, 10" % (S_T1, H))
        A("s_lshl_b32 s%d, s%d, 8" % (S_T2, I))
        A("s_add_u32 s%d, s%d, s%d" % (S_T1, S_T1, S_T2))
        A("s_add_u32 s%d, s%d, s%d" % (S_T1, S_T1, S_T0))
        A("v_lshlrev_b32 v16, 15, v%d" % V_N)
        A("v_lshl_add_u32 v16, v%d, 4, v16" % V_G)
        A("v_add_u32 v%d, s%d, v16" % (V_QS, S_T1))
    A("s_mov_b32 s%d, 0x000f000f" % S_M)
    A("s_mov_b32 s%d, 0x000f000f" % (S_M + 1))
    A("s_mov_b32 s%d, 0xfffefffe" % S_M2)
    A("s_mov_b32 s%d, %s" % (S_M2 + 1, f2u(QSCALE)))
    A.vmwait("x")
    stamp(A, cfg, 1)
    X0 = 52
    L = Asm()
    for d in range(4):
        L("v_lshlrev_b32 v%d, 16, v%d" % (X0 + 2*d, 4 + d))
        L("v_and_b32 v%d, 0xffff0000, v%d" % (X0 + 2*d + 1, 4 + d))
    L("v_readfirstlane_b32 s%d, v%d" % (S_T3, X0))
    L("s_nop 1")
    for k in range(8): L("v_subrev_f32 v%d, s%d, v%d" % (X0 + k, S_T3, X0 + k))
    L("v_add_f32 v60, v52, v53\nv_add_f32 v61, v54, v55\nv_add_f32 v62, v56, v57\nv_add_f32 v63, v58, v59")
    L("v_mul_f32 v64, v52, v52\nv_mul_f32 v65, v53, v53")
    L("v_add_f32 v60, v60, v61\nv_add_f32 v62, v62, v63")
    for k in range(2, 8, 2): L("v_fmac_f32 v64, v%d, v%d\nv_fmac_f32 v65, v%d, v%d" % (X0 + k, X0 + k, X0 + k + 1, X0 + k + 1))
    L("v_add_f32 v60, v60, v62\nv_add_f32 v61, v64, v65")
    allsum2(L, 60, 61, 62, 63)
    L("v_mul_f32 v60, %s, v60" % f2u(1.0/512))
    L("v_mul_f32 v62, v60, v60")
    L("v_fma_f32 v61, v61, s%d, -v62" % S_T2)
    L("v_max_f32 v61, 0, v61")
    L("v_add_f32 v61, %s, v61" % f2u(1e-5))
    L("v_rsq_f32 v61, v61")
    L("s_nop 0")
    L("v_mul_f32 v60, v60, v61")
    for k in range(8): L("v_fma_f32 v%d, v%d, v61, -v60" % (X0 + k, X0 + k))
    for d in range(4): L("v_cvt_pk_bf16_f32 v%d, v%d, v%d" % (4 + d, X0 + 2*d, X0 + 2*d + 1))
    L("ds_write_b128 v%d, v[4:7]" % V_LW)
    L("ds_write_b128 v%d, v[4:7] offset:1024" % V_LW)
    A("s_mov_b32 s%d, %s" % (S_T2, f2u(1.0/512)))
    lines = [l for l in L.lines]
    step = cfg.lnstep
    k = 0
    for idx, l in enumerate(lines):
        A(l)
        nxt = lines[idx + 1] if idx + 1 < len(lines) else ""
        if (idx + 1) % step == 0 and state["n"] < 32 and not l.startswith("s_nop") and not nxt.startswith("s_nop") and "dpp" not in nxt and "permlane" not in nxt:
            dma_wq(SRD0); dma_wq(SRD0)
    A("s_waitcnt lgkmcnt(0)")
    A("s_barrier")
    stamp(A, cfg, 20)
    V_AF = 52
    for n in range(16):
        A("ds_read_b128 %s, v%d offset:%d" % (vr(V_AF + 4*n, 4), V_LR, n*64))
        if n % 4 == 3 and state["n"] < 32: dma_wq(SRD0); dma_wq(SRD0)
    while state["n"] < 32: dma_wq(SRD0)
    A.vmem("global_load_dword v165, v164, %s sc1" % sp(DBG), "cnt")
    A("s_lshl_b32 s%d, s%d, 8" % (S_T0, H))
    A("s_lshl_b32 s%d, s%d, 6" % (S_T1, S_W))
    A("s_add_u32 s%d, s%d, s%d" % (S_T1, S_T1, S_T0))
    srd(A, SRD0, WUV, 0x400000, [S_T1])
    A("s_lshl_b32 m0, s%d, 15" % S_W)
    A("s_lshl_b32 s%d, s%d, 20" % (S_OFF, I))
    V_D = 122
    V_B = 132
    def q_mfma(p):
        for u in range(2):
            n = 2*p + u
            for t in range(2):
                A("v_mfma_f32_16x16x32_bf16 %s, %s, %s, %s" % (vr(V_D + 4*t, 4), vr(V_AF + 4*n, 4), vr(V_B + 16*(p & 1) + 8*u + 4*t, 4), vr(V_D + 4*t, 4) if n else "0"))
    for p in range(8):
        A.vmwait("wq%d" % (4*p + 3))
        for u in range(2):
            n = 2*p + u
            for t in range(2):
                for s2 in range(2):
                    A("ds_read_b64_tr_b16 %s, v%d offset:%d" % (vr(V_B + 16*(p & 1) + 8*u + 4*t + 2*s2, 2), (V_T0, V_T1)[t], n*2048 + s2*256))
        if p:
            A("s_waitcnt lgkmcnt(8)")
            q_mfma(p - 1)
        if p == 3: stamp(A, cfg, 23)
    A("s_waitcnt lgkmcnt(0)")
    q_mfma(7)
    stamp(A, cfg, 2)
    state["n"] = 32
    for q in range(2*cfg.wpre): dma_wq(SRD0)
    A.nop(8)
    A("v_cvt_pk_bf16_f32 v130, v%d, v%d" % (V_D, V_D))
    A("v_cvt_pk_bf16_f32 v131, v%d, v%d" % (V_D + 4, V_D + 4))
    A("ds_write_b16 v%d, v130" % V_QW)
    A("ds_write_b16 v%d, v131 offset:32" % V_QW)
    A("s_waitcnt lgkmcnt(0)")
    A("s_barrier")
    V_QF = 52
    for ks in range(4): A("ds_read_b128 %s, v%d offset:%d" % (vr(V_QF + 4*ks, 4), V_QR, ks*64))
    A.vmwait("cnt")
    A.label("L_W_go")
    A("v_cmp_gt_u32 vcc, 64, v165")
    A("s_cbranch_vccz L_W_gook")
    spin_guard(A, "L_fail", cfg.sl_cnt)
    A("global_load_dword v165, v164, %s sc1" % sp(DBG))
    A("s_waitcnt vmcnt(0)")
    A("s_branch L_W_go")
    A.label("L_W_gook")
    for ks in range(4):
        A("s_waitcnt lgkmcnt(%d)" % (3 - ks))
        for t in range(2):
            A("v_mfma_f32_16x16x32_bf16 %s, %s, %s, %s" % (vr(V_D + 4*t, 4), vr(V_UKF + 16*t + 4*ks, 4), vr(V_QF + 4*ks, 4), vr(V_D + 4*t, 4) if ks else "0"))
    A.nop(7)
    for k in range(8): A("v_mul_f32 v%d, s%d, v%d" % (V_D + k, S_M2 + 1, V_D + k))
    for k in range(4): A("v_cvt_pk_bf16_f32 v%d, v%d, v%d" % (132 + k, V_D + 2*k, V_D + 2*k + 1))
    for k in range(4): A("v_pk_min_u16 v%d, v%d, s%d" % (132 + k, 132 + k, S_M2))
    A("s_mov_b64 exec, %s" % sp(S_M))
    if cfg.qstage:
        A("ds_write_b128 v%d, v[132:135]" % V_QS)
        A("s_mov_b64 exec, -1")
        A("s_waitcnt lgkmcnt(0)")
        A("s_barrier")
        A("s_cmp_lg_u32 s%d, 0" % S_W)
        A("s_cbranch_scc1 L_W_noqa")
        A("ds_read_b128 v[132:135], v19")
        A("s_waitcnt lgkmcnt(0)")
        A("global_store_dwordx4 v12, v[132:135], %s sc1" % sp(WS))
        A.label("L_W_noqa")
    else:
        A.vmem("global_store_dwordx4 v%d, v[132:135], %s sc1" % (V_QS, sp(WS)))
        A("s_mov_b64 exec, -1")
    stamp(A, cfg, 3)
    if cfg.stage <= 1:
        A("s_waitcnt vmcnt(0)")
        A("s_endpgm")
        return
    S_OFF2 = 60
    V_WO, V_I8 = 150, 152
    img256_src(A, V_WO)
    img256_rd(A, V_I8, V_G, V_N, 15)
    A("s_lshl_b32 s%d, s%d, 17" % (S_T0, H))
    A("s_lshl_b32 s%d, s%d, 8" % (S_T1, S_W))
    A("s_add_u32 s%d, s%d, s%d" % (S_T0, S_T0, S_T1))
    srd(A, SRD1, WO, 0x20000, [S_T0])
    A("s_lshl_b32 s%d, s%d, 15" % (S_OFF2, I))
    def issue(idx):
        if idx < 32:
            dma_wq(SRD0)
        else:
            q = idx - 32
            if q == 0:
                A("s_lshl_b32 m0, s%d, 15" % S_W)
                A("s_nop 0")
            A.vmem("buffer_load_dwordx4 v%d, %s, s%d offen%s lds" % (V_WO + ((q >> 1) & 1), sq(SRD1), S_OFF2, cfg.nt_wo), "wo%d" % q)
            A("s_add_u32 m0, m0, 0x400")
            A("s_add_u32 s%d, s%d, 0x1000" % (S_OFF2, S_OFF2))
            A("s_and_b32 s%d, s%d, 0x1ffff" % (S_OFF2, S_OFF2))
    def mk(idx): return ("wq%d" % (32 + idx)) if idx < 32 else ("wo%d" % (idx - 32))
    issued = 2*cfg.wpre
    while issued < cfg.depth:
        issue(issued); issued += 1
    for e in range(1, 33):
        A.vmwait(mk(2*e - 1))
        if e <= 16:
            n = e - 1
            for t in range(2):
                for s2 in range(2):
                    A("ds_read_b64_tr_b16 %s, v%d offset:%d" % (ar(8*n + 4*t + 2*s2, 2), (V_T0, V_T1)[t], n*2048 + s2*256))
        elif e % 4 == 0:
            kk = (e - 20)//4
            for t in range(8):
                for s2 in range(2):
                    A("ds_read_b64_tr_b16 %s, v%d offset:%d" % (ar(128 + 32*kk + 4*t + 2*s2, 2), V_I8 + t, kk*8192 + s2*1024))
        tgt = min(64, 2*e + cfg.depth)
        if issued < tgt and issued >= 32 - 1:
            A("s_waitcnt lgkmcnt(0)")
        while issued < tgt:
            issue(issued); issued += 1
    stamp(A, cfg, 4)
    V_ML, V_E, V_D8, V_TB = 160, 176, 192, 224
    A("s_lshl_b32 s%d, s%d, 5" % (S_T0, I))
    A("s_add_u32 s%d, s%d, s%d" % (S_T0, S_T0, H))
    A("s_lshl_b32 s%d, s%d, 13" % (S_T1, I))
    A("s_lshl_b32 s%d, s%d, 3" % (S_T2, H))
    A("s_add_u32 s%d, s%d, s%d" % (S_T1, S_T1, S_T2))
    A("s_add_u32 s%d, s%d, 0x%x" % (S_T1, S_T1, WS_ML))
    A("v_and_b32 v16, 31, v0")
    A("v_lshlrev_b32 v16, 8, v16")
    A("v_add_u32 v16, s%d, v16" % S_T1)
    A("s_lshl_b32 s%d, s%d, 6" % (S_T1, S_W))
    A("s_add_u32 s%d, s%d, %d" % (S_T1, S_T1, LW_E))
    A("v_and_b32 v142, 31, v0")
    A("v_lshlrev_b32 v142, 1, v142")
    A("v_add_u32 v142, s%d, v142" % S_T1)
    A("v_lshlrev_b32 v141, 4, v%d" % V_G)
    A("v_add_u32 v141, s%d, v141" % S_T1)
    A("s_lshl_b32 s%d, s%d, 15" % (S_T1, S_T0))
    A("s_lshl_b32 s%d, s%d, 8" % (S_T2, S_W))
    A("s_add_u32 s%d, s%d, s%d" % (S_T1, S_T1, S_T2))
    srd(A, SRD2, WS, 0x8000, [S_T1], WS_PART)
    A("s_lshl_b32 s%d, s%d, 10" % (S_T1, S_T0))
    A("s_add_u32 s%d, s%d, s%d" % (S_T1, S_T1, S_T2))
    A("s_add_u32 s%d, s%d, 0x%x" % (S_T1, S_T1, WS_OUTP))
    A("v_and_b32 v17, 1, v0")
    A("v_mul_u32_u24 v17, 126, v17")
    A("v_lshl_add_u32 v17, v0, 1, v17")
    A("v_add_u32 v149, s%d, v17" % S_T1)
    A("s_lshl_b32 s%d, s%d, 8" % (S_T1, S_W))
    A("s_add_u32 s%d, s%d, %d" % (S_T1, S_T1, LW_CTXC))
    A("v_lshlrev_b32 v17, 1, v0")
    A("v_add_u32 v148, s%d, v17" % S_T1)
    A("s_lshl_b32 s%d, s%d, 8" % (S_T1, I))
    A("s_add_u32 s%d, s%d, %d" % (S_T1, S_T1, LW_CTXC))
    A("v_lshlrev_b32 v17, 4, v%d" % V_G)
    A("v_add_u32 v147, s%d, v17" % S_T1)
    A("s_lshl_b32 s%d, s%d, 6" % (S_T1, I))
    A("s_add_u32 s%d, s%d, %d" % (S_T1, S_T1, LW_CTX))
    A("v_add_u32 v146, s%d, v17" % S_T1)
    A("s_lshl_b32 s%d, s%d, 6" % (S_T1, S_W))
    A("s_add_u32 s%d, s%d, %d" % (S_T1, S_T1, LW_CTX))
    A("v_and_b32 v17, 31, v0")
    A("v_lshlrev_b32 v17, 1, v17")
    A("v_add_u32 v145, s%d, v17" % S_T1)
    A("s_mov_b32 s%d, 0xaaaaaaaa" % S_M)
    A("s_mov_b32 s%d, 0xaaaaaaaa" % (S_M + 1))
    A("s_waitcnt lgkmcnt(0)")
    A.label("L_W_ml")
    A("global_load_dwordx2 %s, v16, %s sc1" % (vr(V_ML, 2), sp(WS)))
    A("s_waitcnt vmcnt(0)")
    A("v_max_u32 v18, v%d, v%d" % (V_ML, V_ML + 1))
    A("v_cmp_eq_u32 vcc, -1, v18")
    A("s_cbranch_vccz L_W_mlok")
    spin_guard(A, "L_fail", cfg.sl_ml)
    A("s_branch L_W_ml")
    A.label("L_W_mlok")
    stamp(A, cfg, 5)
    A("s_lshl_b32 m0, s%d, 15" % S_W)
    A("s_mov_b32 s%d, 0" % S_OFF)
    for q in range(8):
        A("buffer_load_dwordx4 v%d, %s, s%d offen sc1 lds" % (V_WO + ((q >> 1) & 1), sq(SRD2), S_OFF))
        if q < 7:
            A("s_add_u32 m0, m0, 0x400")
            A("s_add_u32 s%d, s%d, 0x1000" % (S_OFF, S_OFF))
    A("v_mov_b32 v18, v%d" % V_ML)
    for p in ("quad_perm:[1,0,3,2]", "quad_perm:[2,3,0,1]", "row_half_mirror", "row_mirror"):
        A("s_nop 1")
        A("v_max_f32_dpp v18, v18, v18 %s row_mask:0xf bank_mask:0xf" % p)
    A("v_mov_b32 v19, v18\ns_nop 1\nv_permlane16_swap_b32 v18, v19\nv_max_f32 v18, v18, v19")
    A("v_sub_f32 v%d, v%d, v18" % (V_E, V_ML))
    A("v_exp_f32 v%d, v%d" % (V_E, V_E))
    A("s_nop 0")
    A("v_cvt_pk_bf16_f32 v19, v%d, v%d" % (V_E, V_E))
    A("ds_write_b16 v142, v19")
    A("v_mul_f32 v18, v%d, v%d" % (V_E, V_ML + 1))
    for p in ("quad_perm:[1,0,3,2]", "quad_perm:[2,3,0,1]", "row_half_mirror", "row_mirror"):
        A("s_nop 1")
        A("v_add_f32_dpp v18, v18, v18 %s row_mask:0xf bank_mask:0xf" % p)
    A("v_mov_b32 v19, v18\ns_nop 1\nv_permlane16_swap_b32 v18, v19\nv_add_f32 v18, v18, v19")
    A("s_waitcnt lgkmcnt(0)")
    A("ds_read_b128 %s, v141" % vr(V_E + 8, 4))
    A("v_rcp_f32 v18, v18")
    A("s_waitcnt vmcnt(0) lgkmcnt(0)")
    stamp(A, cfg, 6)
    for t in range(8):
        for s2 in range(2):
            A("ds_read_b64_tr_b16 %s, v%d offset:%d" % (vr(V_AFW + 4*t + 2*s2, 2), V_I8 + t, s2*1024))
    for t in range(8):
        A("s_waitcnt lgkmcnt(%d)" % (14 - 2*t))
        A("v_mfma_f32_16x16x32_bf16 %s, %s, %s, 0" % (vr(V_D8 + 4*t, 4), vr(V_E + 8, 4), vr(V_AFW + 4*t, 4)))
    A.nop(5)
    sel8(A, V_D8)
    for u in range(2):
        d = V_D8 + 16*u
        A("v_mul_f32 v%d, v%d, v18" % (d, d))
        A("v_cvt_pk_bf16_f32 v%d, v%d, v%d" % (d, d, d))
        A("ds_write_b16 v148, v%d offset:%d" % (d, 128*u))
        A("ds_write_b16 v148, v%d offset:%d" % (d, 128*u + 1024))
    A("s_waitcnt lgkmcnt(0)")
    A("s_barrier")
    stamp(A, cfg, 7)
    for n in range(16): A("ds_read_b128 %s, v147 offset:%d" % (vr(V_AFW + 4*n, 4), n*64))
    for n in range(16):
        if n < 16: A("s_waitcnt lgkmcnt(%d)" % min(15, 15 - n))
        for t in range(2):
            A("v_mfma_f32_16x16x32_bf16 %s, %s, %s, %s" % (vr(V_D8 + 4*t, 4), vr(V_AFW + 4*n, 4), ar(8*n + 4*t, 4), vr(V_D8 + 4*t, 4) if n else "0"))
    A.nop(8)
    A("v_mov_b32_dpp v%d, v%d quad_perm:[0,1,2,3] row_mask:0xa bank_mask:0xf" % (V_D8, V_D8 + 4))
    A("v_cvt_pk_bf16_f32 v%d, v%d, v%d" % (V_D8, V_D8, V_D8))
    A("ds_write_b16 v145, v%d" % V_D8)
    A("ds_write_b16 v145, v%d offset:256" % V_D8)
    A("s_waitcnt lgkmcnt(0)")
    A("s_barrier")
    stamp(A, cfg, 8)
    for kk in range(4): A("ds_read_b128 %s, v146 offset:%d" % (vr(V_AFW + 4*kk, 4), kk*64))
    for kk in range(4):
        A("s_waitcnt lgkmcnt(%d)" % (3 - kk))
        for t in range(8):
            A("v_mfma_f32_16x16x32_bf16 %s, %s, %s, %s" % (vr(V_D8 + 4*t, 4), vr(V_AFW + 4*kk, 4), ar(128 + 32*kk + 4*t, 4), vr(V_D8 + 4*t, 4) if kk else "0"))
    A.nop(8)
    sel8(A, V_D8)
    pack_pairs(A, V_D8, V_D8 + 16, 18, 19, S_M)
    A("global_store_dword v149, v18, %s sc1" % sp(WS))
    stamp(A, cfg, 9)
    stamp_flush(A, cfg)
    A("s_endpgm")

V_AFW = 52

def sel8(A, d):
    for k, msk in ((1, 2), (2, 4), (3, 8)):
        for u in range(2):
            A("v_mov_b32_dpp v%d, v%d quad_perm:[0,1,2,3] row_mask:0x%x bank_mask:0xf" % (d + 16*u, d + 16*u + 4*k, msk))

def pack_pairs(A, x0, x1, dst, tmp, smask):
    A("s_nop 0")
    A("v_mov_b32_dpp v%d, v%d quad_perm:[1,0,3,2] row_mask:0xf bank_mask:0xf" % (dst, x0))
    A("v_mov_b32_dpp v%d, v%d quad_perm:[1,0,3,2] row_mask:0xf bank_mask:0xf" % (tmp, x1))
    A("v_cndmask_b32 v%d, v%d, v%d, %s" % (tmp, x0, tmp, sp(smask)))
    A("v_cndmask_b32 v%d, v%d, v%d, %s" % (dst, dst, x1, sp(smask)))
    A("v_cvt_pk_bf16_f32 v%d, v%d, v%d" % (dst, tmp, dst))
    A("s_mov_b32 s%d, 0xfffefffe" % S_T0)
    A("v_pk_min_u16 v%d, v%d, s%d" % (dst, dst, S_T0))

def img256_src(A, v):
    A("v_lshrrev_b32 v16, 4, v0")
    A("v_bfe_u32 v17, v0, 1, 3")
    A("v_xor_b32 v17, v17, v16")
    A("v_lshlrev_b32 v17, 5, v17")
    A("v_lshl_add_u32 v17, v16, 10, v17")
    A("v_and_b32 v16, 1, v0")
    A("v_lshl_add_u32 v%d, v16, 4, v17" % v)
    A("v_xor_b32 v%d, 128, v%d" % (v + 1, v))

def img256_rd(A, v, vg, vn, wshift, base=0):
    A("v_lshrrev_b32 v16, 2, v%d" % vn)
    A("v_and_b32 v17, 1, v%d" % vg)
    A("v_lshl_or_b32 v17, v17, 2, v16")
    A("v_lshlrev_b32 v17, 5, v17")
    A("v_lshl_add_u32 v16, v%d, 3, v16" % vg)
    A("v_lshl_add_u32 v17, v16, 8, v17")
    A("v_and_b32 v16, 3, v%d" % vn)
    A("v_lshl_add_u32 v17, v16, 3, v17")
    A("s_lshl_b32 s%d, s%d, %d" % (S_T0, S_W, wshift))
    if base: A("s_add_u32 s%d, s%d, %d" % (S_T0, S_T0, base))
    A("v_add_u32 v%d, s%d, v17" % (v, S_T0))
    for t in range(1, 8): A("v_xor_b32 v%d, %d, v%d" % (v + t, t*32, v))

LA_R32 = 131072
LA_MAX = 0
LA_SUM = 512
LA_P = 1024
LA_OT = 16384

def fswz(r): return ((r & 3) << 2) | ((r >> 2) & 3)

def role_A(A, cfg):
    B, J = S_A, S_B
    A.label("L_A")
    A.vmreset()
    stamp(A, cfg, 0)
    A("s_sub_u32 s%d, s%d, 16" % (S_T0, S_SLOT))
    A("s_and_b32 s%d, s%d, 3" % (B, S_T0))
    A("s_lshr_b32 s%d, s%d, 2" % (S_T0, S_T0))
    A("s_lshl_b32 s%d, s%d, 3" % (S_T0, S_T0))
    A("s_add_u32 s%d, s%d, s%d" % (J, S_T0, S_XCD))
    A("v_lshlrev_b32 v4, 4, v0")
    V_CO = 8
    for r in range(16): A("v_xor_b32 v%d, %d, v4" % (V_CO + r, fswz(r)*16))
    A("s_lshl_b32 s%d, s%d, 22" % (S_T0, B))
    A("s_lshl_b32 s%d, s%d, 17" % (S_T1, J))
    A("s_add_u32 s%d, s%d, s%d" % (S_T0, S_T0, S_T1))
    A("s_lshl_b32 s%d, s%d, 15" % (S_T1, S_W))
    A("s_add_u32 s%d, s%d, s%d" % (S_T0, S_T0, S_T1))
    A("s_mov_b32 s61, s%d" % S_T0)
    A("v_and_b32 v24, 1, v0")
    A("v_lshlrev_b32 v24, 7, v24")
    A("s_lshl_b32 s%d, s%d, 5" % (S_T0, B))
    A("s_add_u32 s60, s%d, s%d" % (S_T0, J))
    A("s_lshl_b32 s%d, s60, 10" % S_T1)
    A("s_cmp_eq_u32 s%d, 2" % S_W)
    A("s_cbranch_scc1 L_A_cl2")
    A("s_cmp_eq_u32 s%d, 0" % S_W)
    A("s_mov_b32 s%d, 0x%x" % (S_T2, WS_OUTP))
    A("s_cselect_b32 s%d, 0, s%d" % (S_T2, S_T2))
    A("s_add_u32 s%d, s%d, s%d" % (S_T1, S_T1, S_T2))
    A("v_add_u32 v59, s%d, v4" % S_T1)
    A("s_branch L_A_cld")
    A.label("L_A_cl2")
    A("s_lshl_b32 s%d, s60, 8" % S_T1)
    A("s_add_u32 s%d, s%d, 0x%x" % (S_T1, S_T1, WS_ML))
    A("s_lshl_b32 s%d, s60, 7" % S_T2)
    A("s_add_u32 s%d, s%d, 0x%x" % (S_T2, S_T2, WS_HMID - 256))
    A("v_and_b32 v59, 15, v0")
    A("v_lshlrev_b32 v59, 4, v59")
    A("v_add_u32 v59, s%d, v59" % S_T1)
    A("v_add_u32 v5, s%d, v4" % S_T2)
    A("v_lshrrev_b32 v6, 3, v0")
    A("v_cmp_eq_u32 vcc, 2, v6")
    A("s_nop 1")
    A("v_cndmask_b32 v59, v59, v5, vcc")
    A.label("L_A_cld")
    A("v_mov_b32 v60, -1\nv_mov_b32 v61, -1\nv_mov_b32 v62, -1\nv_mov_b32 v63, -1")
    A("s_waitcnt lgkmcnt(0)")
    A.vmem("global_store_dwordx4 v59, v[60:63], %s sc1" % sp(WS), "clear")
    if cfg.codepf:
        A("s_sub_u32 s%d, s%d, 16" % (S_T0, S_SLOT))
        A("s_lshl_b32 s%d, s%d, 2" % (S_T0, S_T0))
        A("s_add_u32 s%d, s%d, s%d" % (S_T0, S_T0, S_W))
        A("s_lshl_b32 s%d, s%d, 9" % (S_T0, S_T0))
        A("v_lshlrev_b32 v2, 3, v0")
        A("v_add_u32 v2, s%d, v2" % S_T0)
        A("v_min_u32 v2, L_code_end-L_pc-8, v2")
        A.vmem("global_load_dwordx2 v[2:3], v2, %s" % sp(S_PC))
    if cfg.touch:
        A("v_lshlrev_b32 v1, 17, v0")
        A.vmem("global_load_dword v250, v1, %s" % sp(WS))
        A("v_lshlrev_b32 v6, 15, v0")
        A("v_min_u32 v6, %d, v6" % (512*2752 - 4))
        A.vmem("global_load_dword v251, v6, %s" % sp(WG))
        A.vmem("global_load_dword v252, v6, %s" % sp(WU))
        A.vmem("global_load_dword v253, v6, %s" % sp(WD))
        A("v_mov_b32 v6, 0")
        A.vmem("global_load_dword v249, v6, %s" % sp(OUT))
        A("s_nop 0")
    def ckv_stream():
        A("s_lshl_b32 m0, s%d, 15" % S_W)
        A("s_mov_b32 s%d, 0" % S_OFF)
        srd(A, SRD0, CKV, 0x8000, [61])
        for r in range(32):
            A.vmem("buffer_load_dwordx4 v%d, %s, s%d offen offset:%d%s lds" % (V_CO + (r & 15), sq(SRD0), S_OFF, (r & 3)*1024, cfg.nt_ckv), "ckv")
            A.mark("ckv%d" % r)
            if r % 4 == 3 and r != 31:
                A("s_add_u32 m0, m0, 0x1000")
                A("s_add_u32 s%d, s%d, 0x1000" % (S_OFF, S_OFF))
            if cfg.astage and r == cfg.astage - 1: A.vmwait("ckv%d" % (cfg.astage - 1 - cfg.akeep))
            if r == 23:
                A.vmem("global_load_dword v25, v24, %s sc1" % sp(DBG), "cnt")
    if not cfg.alate:
        A("s_waitcnt lgkmcnt(0)")
        ckv_stream()
    V_QK, V_PV, V_QD, V_RB = 26, 34, 50, 58
    V_MW, V_MR, V_PW, V_PR, V_ML = 200, 201, 202, 203, 204
    V_OW, V_OR, V_OG = 224, 232, 233
    A("v_and_b32 v5, 3, v0")
    A("v_lshlrev_b32 v5, 2, v5")
    A("v_bfe_u32 v6, v0, 2, 2")
    A("v_or_b32 v5, v5, v6")
    A("v_lshrrev_b32 v6, 5, v0")
    A("v_xor_b32 v5, v5, v6")
    A("v_lshlrev_b32 v5, 4, v5")
    A("v_and_b32 v7, 31, v0")
    A("v_lshl_add_u32 v5, v7, 10, v5")
    A("s_lshl_b32 s%d, s%d, 15" % (S_T0, S_W))
    A("v_add_u32 v%d, s%d, v5" % (V_QK, S_T0))
    for v in range(1, 8): A("v_xor_b32 v%d, %d, v%d" % (V_QK + v, v*32, V_QK))
    A("v_bfe_u32 v64, v0, 2, 2")
    A("v_lshlrev_b32 v65, 2, v6")
    A("v_add_u32 v65, v65, v64")
    A("v_lshlrev_b32 v65, 10, v65")
    A("v_bfe_u32 v66, v0, 4, 1")
    A("v_lshlrev_b32 v66, 1, v66")
    A("v_bfe_u32 v67, v0, 1, 1")
    A("v_or_b32 v66, v66, v67")
    A("v_xor_b32 v66, v66, v6")
    A("v_lshl_or_b32 v66, v64, 2, v66")
    A("v_lshl_add_u32 v65, v66, 4, v65")
    A("v_and_b32 v66, 1, v0")
    A("v_lshl_add_u32 v65, v66, 3, v65")
    A("s_lshl_b32 s%d, s%d, 8" % (S_T0, S_W))
    A("v_add_u32 v65, s%d, v65" % S_T0)
    for t in range(4):
        for s2 in range(2):
            k = V_PV + 4*t + 2*s2
            A("v_xor_b32 v%d, %d, v65" % (k, (t*64) ^ (s2*32)))
            A("v_add_u32 v%d, 0x10000, v%d" % (k + 1, k))
    A("s_lshl_b32 s%d, s%d, 1" % (S_T0, S_W))
    A("s_and_b32 s%d, s%d, 3" % (S_T1, S_T0))
    A("s_lshl_b32 s%d, s%d, 4" % (S_T1, S_T1))
    A("s_add_u32 s%d, s%d, 1" % (S_T0, S_T0))
    A("s_and_b32 s%d, s%d, 3" % (S_T0, S_T0))
    A("s_lshl_b32 s%d, s%d, 4" % (S_T0, S_T0))
    for r in range(8):
        A("v_xor_b32 v%d, %d, v4" % (V_QD + r, (r & 3) << 6))
        A("v_xor_b32 v%d, s%d, v%d" % (V_QD + r, (S_T1, S_T0)[r >> 2], V_QD + r))
    A("s_lshl_b32 s%d, s%d, 13" % (S_T0, S_W))
    A("s_add_u32 s%d, s%d, %d" % (S_T0, S_T0, LA_R32))
    A("v_add_u32 v%d, s%d, v4" % (V_RB, S_T0))
    A("s_mov_b32 s%d, s%d" % (S_T3, S_T0))
    A("s_lshl_b32 s%d, s%d, 15" % (S_T1, B))
    A("s_lshl_b32 s%d, s%d, 13" % (S_T2, S_W))
    A("s_add_u32 s%d, s%d, s%d" % (S_T1, S_T1, S_T2))
    srd(A, SRD1, WS, 0x2000, [S_T1], WS_QA)
    A("v_lshlrev_b32 v5, 4, v7")
    A("s_lshl_b32 s%d, s%d, 2" % (S_T0, S_W))
    A("s_add_u32 s%d, s%d, %d" % (S_T0, S_T0, LA_MAX))
    A("v_add_u32 v%d, s%d, v5" % (V_MW, S_T0))
    A("v_add_u32 v%d, %d, v5" % (V_MR, LA_MAX))
    A("s_lshl_b32 s%d, s%d, 11" % (S_T0, S_W))
    A("s_add_u32 s%d, s%d, %d" % (S_T0, S_T0, LA_P))
    A("v_add_u32 v%d, s%d, v4" % (V_PW, S_T0))
    A("v_add_u32 v%d, %d, v4" % (V_PR, LA_P))
    A("s_lshl_b32 s%d, s60, 8" % S_T0)
    A("s_add_u32 s%d, s%d, 0x%x" % (S_T0, S_T0, WS_ML))
    A("v_lshlrev_b32 v5, 3, v7")
    A("v_add_u32 v%d, s%d, v5" % (V_ML, S_T0))
    A("s_lshl_b32 s%d, s%d, 12" % (S_T0, S_W))
    A("s_add_u32 s%d, s%d, %d" % (S_T0, S_T0, LA_OT))
    A("v_add_u32 v%d, s%d, v4" % (V_OR, S_T0))
    A("v_lshlrev_b32 v64, 7, v7")
    A("v_add_u32 v64, s%d, v64" % S_T0)
    A("v_and_b32 v65, 7, v7")
    A("v_xor_b32 v65, v65, v6")
    A("v_lshl_add_u32 v%d, v65, 4, v64" % V_OW)
    for k in range(1, 4): A("v_xor_b32 v%d, %d, v%d" % (V_OW + k, k*32, V_OW))
    A("v_lshrrev_b32 v64, 3, v0")
    A("v_and_b32 v65, 7, v0")
    A("v_xor_b32 v65, v65, v64")
    A("v_lshlrev_b32 v65, 4, v65")
    A("v_lshl_add_u32 v65, v64, 15, v65")
    A("s_lshl_b32 s%d, s%d, 20" % (S_T0, B))
    A("s_lshl_b32 s%d, s%d, 10" % (S_T1, J))
    A("s_add_u32 s%d, s%d, s%d" % (S_T0, S_T0, S_T1))
    A("s_lshl_b32 s%d, s%d, 8" % (S_T1, S_W))
    A("s_add_u32 s%d, s%d, s%d" % (S_T0, S_T0, S_T1))
    A("s_add_u32 s%d, s%d, 0x%x" % (S_T0, S_T0, WS_PART))
    A("v_add_u32 v%d, s%d, v65" % (V_OG, S_T0))
    for r in range(1, 4): A("v_add_u32 v%d, 0x%x, v%d" % (V_OG + r, r*0x40000, V_OG))
    A.vmwait("clear")
    A("s_barrier")
    A("s_cmp_lg_u32 s%d, 0" % S_W)
    A("s_cbranch_scc1 L_A_noat")
    A("s_and_b32 s%d, s60, 1" % S_T0)
    A("s_lshl_b32 s%d, s%d, 7" % (S_T0, S_T0))
    A("v_mov_b32 v5, s%d" % S_T0)
    A("v_mov_b32 v6, 1")
    A("s_mov_b64 exec, 1")
    A("global_atomic_add v5, v6, %s sc1" % sp(DBG))
    A("s_mov_b64 exec, -1")
    if cfg.atwait: A("s_waitcnt vmcnt(0)")
    if cfg.gwait:
        A.label("L_A_gw")
        A("global_load_dword v25, v24, %s sc1" % sp(DBG))
        A("s_waitcnt vmcnt(0)")
        A("v_cmp_gt_u32 vcc, %d, v25" % cfg.gwait)
        A("s_cbranch_vccz L_A_noat")
        spin_guard(A, "L_fail", cfg.sl_gw)
        A("s_branch L_A_gw")
    A.label("L_A_noat")
    if cfg.atwait: A("s_barrier")
    stamp(A, cfg, 16)
    ckv_stream()
    A.vmwait("ckv")
    A("s_barrier")
    stamp(A, cfg, 1)
    A.label("L_A_cnt")
    A("v_cmp_gt_u32 vcc, 64, v25")
    A("s_cbranch_vccz L_A_cntok")
    spin_guard(A, "L_fail", cfg.sl_cnt)
    A("global_load_dword v25, v24, %s sc1" % sp(DBG))
    A("s_waitcnt vmcnt(0)")
    A("s_branch L_A_cnt")
    A.label("L_A_cntok")
    stamp(A, cfg, 2)
    V_T = 60
    def qa_issue():
        A("s_mov_b32 m0, s%d" % S_T3)
        A("s_mov_b32 s%d, 0" % S_OFF)
        for r in range(8):
            A("buffer_load_dwordx4 v%d, %s, s%d offen offset:%d sc1 lds" % (V_QD + r, sq(SRD1), S_OFF, (r & 3)*1024))
            if r == 3:
                A("s_add_u32 m0, m0, 0x1000")
                A("s_mov_b32 s%d, 0x1000" % S_OFF)
    qa_issue()
    seq = [(t, s) for t in range(4) for s in range(8)]
    for s in range(32):
        A("ds_read_b128 %s, v%d offset:%d" % (ar(4*s, 4), V_QK + (s & 7), (s >> 3)*256))
    for i, (t, s) in enumerate(seq):
        for s2 in range(2):
            A("ds_read_b64_tr_b16 %s, v%d offset:%d" % (ar(128 + 4*i + 2*s2, 2), V_PV + 4*t + 2*s2 + (s >> 2), (s & 3)*16384 + s2*8192))
    A("s_lshl_b32 s%d, s%d, 15" % (S_T0, S_W))
    A("s_sub_u32 s%d, %d, s%d" % (S_T0, LA_R32, S_T0))
    for v in range(8): A("v_add_u32 v%d, s%d, v%d" % (V_QK + v, S_T0, V_QK + v))
    A("s_branch L_A_qachk")
    A.label("L_A_qa")
    qa_issue()
    A.label("L_A_qachk")
    A("s_waitcnt vmcnt(0)")
    for r in range(8): A("ds_read_b128 %s, v%d offset:%d" % (vr(V_T + 4*r, 4), V_RB, r*1024))
    A("s_waitcnt lgkmcnt(0)")
    maxtree(A, V_T, 32)
    A("v_cmp_eq_u32 vcc, -1, v%d" % V_T)
    A("s_cbranch_vccz L_A_qaok")
    spin_guard(A, "L_fail", cfg.sl_qa)
    A("s_branch L_A_qa")
    A.label("L_A_qaok")
    A("s_barrier")
    stamp(A, cfg, 3)
    V_S, V_BQ, NB = 96, 112, 6
    def rd(s): A("ds_read_b128 %s, v%d offset:%d" % (vr(V_BQ + 4*(s % NB), 4), V_QK + (s & 7), (s >> 3)*256))
    for s in range(NB - 1): rd(s)
    for s in range(32):
        if s + NB - 1 < 32: rd(s + NB - 1)
        A("s_waitcnt lgkmcnt(%d)" % min(NB - 1, 31 - s))
        A("v_mfma_f32_32x32x16_bf16 %s, %s, %s, %s" % (vr(V_S, 16), ar(4*s, 4), vr(V_BQ + 4*(s % NB), 4), vr(V_S, 16) if s else "0"))
    stamp(A, cfg, 4)
    A.nop(12)
    A("v_max3_f32 v60, v%d, v%d, v%d" % (V_S, V_S + 1, V_S + 2))
    A("v_max3_f32 v61, v%d, v%d, v%d" % (V_S + 3, V_S + 4, V_S + 5))
    for k in range(6, 14, 4):
        A("v_max3_f32 v60, v60, v%d, v%d" % (V_S + k, V_S + k + 1))
        A("v_max3_f32 v61, v61, v%d, v%d" % (V_S + k + 2, V_S + k + 3))
    A("v_max3_f32 v60, v60, v%d, v%d" % (V_S + 14, V_S + 15))
    A("v_max_f32 v60, v60, v61")
    A("v_mov_b32 v61, v60")
    A("s_nop 1")
    A("v_permlane32_swap_b32 v60, v61")
    A("v_max_f32 v60, v60, v61")
    A("ds_write_b32 v%d, v60" % V_MW)
    for k in range(16): A("v_sub_f32 v%d, v%d, v60" % (V_S + k, V_S + k))
    A("s_waitcnt lgkmcnt(0)")
    A("s_barrier")
    A("ds_read_b128 v[64:67], v%d" % V_MR)
    for k in range(16): A("v_exp_f32 v%d, v%d" % (V_S + k, V_S + k))
    A("s_waitcnt lgkmcnt(0)")
    A("v_max3_f32 v62, v64, v65, v66")
    A("v_max_f32 v62, v62, v67")
    A("v_sub_f32 v63, v60, v62")
    A("v_exp_f32 v63, v63")
    A("s_nop 0")
    for k in range(8): A("v_pk_mul_f32 %s, %s, v[62:63] op_sel:[0,1] op_sel_hi:[1,1]" % (vr(V_S + 2*k, 2), vr(V_S + 2*k, 2)))
    for k in range(8): A("v_cvt_pk_bf16_f32 v%d, v%d, v%d" % (68 + k, V_S + 2*k, V_S + 2*k + 1))
    A("ds_write_b128 v%d, v[68:71]" % V_PW)
    A("ds_write_b128 v%d, v[72:75] offset:1024" % V_PW)
    A("s_waitcnt lgkmcnt(0)")
    A("s_barrier")
    stamp(A, cfg, 5)
    V_P = 136
    for s in range(8): A("ds_read_b128 %s, v%d offset:%d" % (vr(V_P + 4*s, 4), V_PR, s*1024))
    lsum = []
    for k in range(4): lsum.append("v_pk_add_f32 %s, %s, %s" % (vr(V_S + 2*k, 2), vr(V_S + 2*k, 2), vr(V_S + 8 + 2*k, 2)))
    for k in range(2): lsum.append("v_pk_add_f32 %s, %s, %s" % (vr(V_S + 2*k, 2), vr(V_S + 2*k, 2), vr(V_S + 4 + 2*k, 2)))
    lsum.append("v_pk_add_f32 %s, %s, %s" % (vr(V_S, 2), vr(V_S, 2), vr(V_S + 2, 2)))
    lsum += ["v_add_f32 v64, v%d, v%d" % (V_S, V_S + 1), "v_mov_b32 v65, v64", "s_nop 1", "v_permlane32_swap_b32 v64, v65",
             "v_add_f32 v64, v64, v65", "DS ds_write_b32 v%d, v64 offset:512" % V_MW, "v_min_u32 v62, -2, v62"]
    V_O = 168
    def cvt_part(t):
        d = V_O + 16*(t & 1); c = 216
        ops = []
        for k in range(8): ops.append("v_cvt_pk_bf16_f32 v%d, v%d, v%d" % (c + k, d + 2*k, d + 2*k + 1))
        ops.append("s_nop 0")
        for (a, b) in ((0, 2), (1, 3), (4, 6), (5, 7)): ops.append("v_permlane32_swap_b32 v%d, v%d" % (c + a, c + b))
        for q in range(2): ops.append("ds_write_b128 v%d, %s" % (V_OW + 2*(t & 1) + q, vr(c + 4*q, 4)))
        return ops
    def rd_part(): return ["ds_read_b128 %s, v%d offset:%d" % (vr(72 + 4*r, 4), V_OR, r*1024) for r in range(4)]
    def st_part(tp): return ["VM global_store_dwordx4 v%d, %s, %s offset:%d sc1" % (V_OG + r, vr(72 + 4*r, 4), sp(WS), tp*128) for r in range(4)]
    def emit(o):
        if o.startswith("VM "): A.vmem(o[3:])
        elif o.startswith("DS "): A(o[3:])
        else: A(o)
    fill = {i: [] for i in range(32)}
    def place(ops, first, per):
        i = first
        while ops:
            fill[i] += ops[:per]; ops = ops[per:]; i += 1
    place(lsum, 1, 3)
    place(cvt_part(0), 10, cfg.epi_n)
    place(cvt_part(1), 18, cfg.epi_n)
    place(rd_part(), 22, 4)
    fill[24] += ["s_waitcnt lgkmcnt(0)"] + st_part(0)[:2]
    fill[25] += st_part(0)[2:]
    place(cvt_part(2), 26, cfg.epi_n)
    for i, (t, s) in enumerate(seq):
        if t == 0: A("s_waitcnt lgkmcnt(%d)" % (7 - s if s < 2 else 0)) if s < 2 or s == 2 else None
        d = V_O + 16*(t & 1)
        A("v_mfma_f32_32x32x16_bf16 %s, %s, %s, %s" % (vr(d, 16), ar(128 + 4*i, 4), vr(V_P + 4*s, 4), vr(d, 16) if s else "0"))
        for o in fill[i]: emit(o)
    A.nop(12)
    for o in cvt_part(3): emit(o)
    for o in rd_part(): emit(o)
    for r, o in enumerate(st_part(1)):
        A("s_waitcnt lgkmcnt(%d)" % (3 - r))
        emit(o)
    stamp(A, cfg, 6)
    A("s_barrier")
    A("ds_read_b128 v[64:67], v201 offset:512")
    A("s_waitcnt lgkmcnt(0)")
    A("v_add_f32 v64, v64, v65\nv_add_f32 v66, v66, v67\nv_add_f32 v63, v64, v66")
    A("v_min_u32 v63, -2, v63")
    A("s_waitcnt vmcnt(0)")
    A("s_barrier")
    A("s_cmp_lg_u32 s%d, 0" % S_W)
    A("s_cbranch_scc1 L_A_noml")
    A("s_mov_b32 exec_hi, 0")
    A("global_store_dwordx2 v204, v[62:63], %s sc1" % sp(WS))
    A("s_mov_b32 exec_hi, -1")
    A.label("L_A_noml")
    stamp(A, cfg, 7)
    if cfg.stage <= 3:
        A("s_waitcnt vmcnt(0)")
        A("s_endpgm")
        return
    A("s_barrier")
    A("s_cmp_ge_u32 s%d, 24" % J)
    A("s_cbranch_scc1 L_S7")
    A("s_cmp_ge_u32 s%d, 22" % J)
    A("s_cbranch_scc1 L_end")
    role_S6(A, cfg)
    role_S7(A, cfg)

def role_S6(A, cfg):
    B, J = S_A, S_B
    A.vmreset()
    V_G, V_N = 5, 6
    A("v_lshrrev_b32 v%d, 4, v0" % V_G)
    A("v_and_b32 v%d, 15, v0" % V_N)
    A("v_lshrrev_b32 v16, 3, v0")
    A("v_mul_u32_u24 v18, 2752, v16")
    A("v_bfe_u32 v16, v0, 4, 1")
    A("v_bfe_u32 v17, v0, 1, 2")
    A("v_xor_b32 v17, v17, v16")
    A("v_lshl_add_u32 v18, v17, 5, v18")
    A("v_and_b32 v16, 1, v0")
    A("v_lshl_add_u32 v8, v16, 4, v18")
    A("v_xor_b32 v17, 2, v17")
    A("v_lshrrev_b32 v16, 3, v0")
    A("v_mul_u32_u24 v18, 2752, v16")
    A("v_lshl_add_u32 v18, v17, 5, v18")
    A("v_and_b32 v16, 1, v0")
    A("v_lshl_add_u32 v9, v16, 4, v18")
    A("s_lshl_b32 s%d, s%d, 7" % (S_T0, J))
    A("s_sub_u32 s%d, %d, s%d" % (S_T1, 512*2752, S_T0))
    srd(A, SRD0, WG, 0, [S_T0]); A("s_mov_b32 s%d, s%d" % (SRD0 + 2, S_T1))
    srd(A, SRD1, WU, 0, [S_T0]); A("s_mov_b32 s%d, s%d" % (SRD1 + 2, S_T1))
    A("s_mul_i32 s%d, s%d, %d" % (S_T2, S_W, 128*2752))
    for mat in range(2):
        A("s_lshl_b32 m0, s%d, 14" % S_W)
        if mat: A("s_add_u32 m0, m0, 0x10000")
        A("s_mov_b32 s%d, s%d" % (S_OFF, S_T2))
        for q in range(16):
            A.vmem("buffer_load_dwordx4 v%d, %s, s%d offen%s lds" % (8 + (q & 1), sq((SRD0, SRD1)[mat]), S_OFF, cfg.nt_ffn), "w")
            if q < 15:
                A("s_add_u32 m0, m0, 0x400")
                A("s_add_u32 s%d, s%d, %d" % (S_OFF, S_OFF, 8*2752))
    A("s_lshl_b32 s%d, s%d, 10" % (S_T0, B))
    A("s_lshl_b32 s%d, s%d, 8" % (S_T1, S_W))
    A("s_add_u32 s%d, s%d, s%d" % (S_T0, S_T0, S_T1))
    A("v_lshlrev_b32 v10, 1, v0")
    A("v_add_u32 v10, s%d, v10" % S_T0)
    A.vmem("global_load_ushort v12, v10, %s" % sp(X), "x")
    A.vmem("global_load_ushort v13, v10, %s offset:128" % sp(X), "x")
    V_WO, V_I8 = 14, 20
    img256_src(A, V_WO)
    img256_rd(A, V_I8, V_G, V_N, 13, LA_R32)
    A("v_lshrrev_b32 v16, 2, v%d" % V_N)
    A("v_lshrrev_b32 v17, 1, v16")
    A("v_and_b32 v18, 1, v%d" % V_G)
    A("v_lshl_or_b32 v17, v18, 1, v17")
    A("v_xor_b32 v17, s%d, v17" % S_W)
    A("v_lshlrev_b32 v17, 5, v17")
    A("v_lshl_add_u32 v16, v%d, 3, v16" % V_G)
    A("v_lshl_add_u32 v17, v16, 7, v17")
    A("v_and_b32 v16, 3, v%d" % V_N)
    A("v_lshl_add_u32 v28, v16, 3, v17")
    A("v_add_u32 v29, 0x10000, v28")
    A("s_lshl_b32 s%d, s%d, 15" % (S_T0, B))
    A("s_lshl_b32 s%d, s%d, 8" % (S_T1, S_W))
    A("s_add_u32 s%d, s%d, s%d" % (S_T0, S_T0, S_T1))
    srd(A, SRD2, WS, 0x8000, [S_T0], WS_OUTP)
    A("s_lshl_b32 s%d, s%d, 13" % (S_T3, S_W))
    A("s_add_u32 s%d, s%d, %d" % (S_T3, S_T3, LA_R32))
    A("s_lshl_b32 s%d, s%d, 8" % (S_T0, S_W))
    A("v_lshlrev_b32 v16, 1, v0")
    A("v_add_u32 v30, s%d, v16" % S_T0)
    A("v_lshrrev_b32 v16, 3, v%d" % V_N)
    A("v_lshlrev_b32 v16, 10, v16")
    A("v_lshl_add_u32 v31, v%d, 4, v16" % V_G)
    A("s_mul_i32 s%d, s%d, %d" % (S_T0, B, HM_ROW))
    A("s_lshl_b32 s%d, s%d, 7" % (S_T1, J))
    A("s_add_u32 s%d, s%d, s%d" % (S_T0, S_T0, S_T1))
    A("s_add_u32 s%d, s%d, 0x%x" % (S_T0, S_T0, WS_HMID))
    A("v_and_b32 v16, 31, v0")
    A("v_lshlrev_b32 v16, 2, v16")
    A("v_add_u32 v19, s%d, v16" % S_T0)
    A("v_add_u32 v35, 2048, v16")
    A("s_lshl_b32 s%d, s%d, 5" % (S_T0, S_W))
    A("s_add_u32 s%d, s%d, 2048" % (S_T0, S_T0))
    A("v_lshlrev_b32 v16, 1, v%d" % V_N)
    A("v_add_u32 v32, s%d, v16" % S_T0)
    A("v_mov_b32 v36, 0x3f803f80\nv_mov_b32 v37, 0x3f803f80\nv_mov_b32 v38, 0x3f803f80\nv_mov_b32 v39, 0x3f803f80")
    A("s_waitcnt vmcnt(0)")
    A("v_lshlrev_b32 v12, 16, v12")
    A("v_lshlrev_b32 v13, 16, v13")
    A("s_barrier")
    stamp(A, cfg, 8)
    for mat in range(2):
        for ks in range(16):
            for s2 in range(2):
                A("ds_read_b64_tr_b16 %s, v%d offset:%d" % (ar(64*mat + 4*ks + 2*s2, 2), 28 + mat, ks*4096 + s2*512))
    A("s_waitcnt lgkmcnt(0)")
    A("s_barrier")
    A("s_lshl_b32 s%d, s%d, 8" % (S_T0, S_W))
    A("v_lshlrev_b32 v16, 2, v0")
    A("v_add_u32 v16, s%d, v16" % S_T0)
    A("ds_write_b32 v16, v36 offset:1024")
    stamp(A, cfg, 9)
    V_F, V_D8 = 64, 96
    A.label("L_S6_g")
    A("s_mov_b32 m0, s%d" % S_T3)
    A("s_mov_b32 s%d, 0" % S_OFF)
    for q in range(8):
        A("buffer_load_dwordx4 v%d, %s, s%d offen sc1 lds" % (V_WO + ((q >> 1) & 1), sq(SRD2), S_OFF))
        if q < 7:
            A("s_add_u32 m0, m0, 0x400")
            A("s_add_u32 s%d, s%d, 0x1000" % (S_OFF, S_OFF))
    A("s_waitcnt vmcnt(0)")
    for t in range(8):
        for s2 in range(2):
            A("ds_read_b64_tr_b16 %s, v%d offset:%d" % (vr(V_F + 4*t + 2*s2, 2), V_I8 + t, s2*1024))
    for t in range(8):
        A("s_waitcnt lgkmcnt(%d)" % (14 - 2*t))
        A("v_mfma_f32_16x16x32_bf16 %s, v[36:39], %s, 0" % (vr(V_D8 + 4*t, 4), vr(V_F + 4*t, 4)))
        if t == 0:
            A("v_pk_max_u16 v33, v%d, v%d" % (V_F, V_F + 1))
            A("v_pk_max_u16 v34, v%d, v%d" % (V_F + 2, V_F + 3))
        else:
            for k in range(4): A("v_pk_max_u16 v%d, v%d, v%d" % (33 + (k & 1), 33 + (k & 1), V_F + 4*t + k))
    A("v_pk_max_u16 v33, v33, v34")
    A("v_lshlrev_b32 v34, 16, v33")
    A("v_max_u32 v33, v33, v34")
    A("v_cmp_le_u32 vcc, 0xffff0000, v33")
    A("s_cbranch_vccz L_S6_ok")
    spin_guard(A, "L_fail", cfg.sl_out)
    A("s_branch L_S6_g")
    A.label("L_S6_ok")
    stamp(A, cfg, 10)
    A.nop(3)
    sel8(A, V_D8)
    A("v_add_f32 v%d, v%d, v12" % (V_D8, V_D8))
    A("v_add_f32 v%d, v%d, v13" % (V_D8 + 16, V_D8 + 16))
    A("v_cvt_pk_bf16_f32 v%d, v%d, v%d" % (V_D8, V_D8, V_D8))
    A("v_cvt_pk_bf16_f32 v%d, v%d, v%d" % (V_D8 + 16, V_D8 + 16, V_D8 + 16))
    A("ds_write_b16 v30, v%d" % V_D8)
    A("ds_write_b16 v30, v%d offset:128" % (V_D8 + 16))
    A("s_waitcnt lgkmcnt(0)")
    A("s_barrier")
    stamp(A, cfg, 11)
    V_AF = 128
    A("ds_read_b128 v[40:43], v4")
    for ks in range(16): A("ds_read_b128 %s, v31 offset:%d" % (vr(V_AF + 4*ks, 4), ks*64))
    st = []
    for d in range(4):
        st.append("v_lshlrev_b32 v%d, 16, v%d" % (44 + 2*d, 40 + d))
        st.append("v_and_b32 v%d, 0xffff0000, v%d" % (45 + 2*d, 40 + d))
    st += ["v_add_f32 v52, v44, v45", "v_add_f32 v53, v46, v47", "v_add_f32 v54, v48, v49", "v_add_f32 v55, v50, v51",
           "v_add_f32 v52, v52, v53", "v_add_f32 v54, v54, v55", "v_add_f32 v52, v52, v54"]
    T = Asm(); wave_allsum(T, 52, 53); st += T.lines
    st.append("v_mul_f32 v52, %s, v52" % f2u(1.0/512))
    for k in range(8): st.append("v_sub_f32 v%d, v%d, v52" % (44 + k, 44 + k))
    st.append("v_mul_f32 v54, v44, v44")
    for k in range(1, 8): st.append("v_fmac_f32 v54, v%d, v%d" % (44 + k, 44 + k))
    T = Asm(); wave_allsum(T, 54, 53); st += T.lines
    st += ["v_mov_b32 v55, %s" % f2u(1e-5), "v_fmac_f32 v55, %s, v54" % f2u(1.0/512), "v_rsq_f32 v55, v55"]
    DG, DU = 56, 60
    for ks in range(16):
        A("s_waitcnt lgkmcnt(%d)" % min(15, 15 - ks))
        for mat in range(2):
            d = (DG, DU)[mat]
            A("v_mfma_f32_16x16x32_bf16 %s, %s, %s, %s" % (vr(d, 4), vr(V_AF + 4*ks, 4), ar(64*mat + 4*ks, 4), vr(d, 4) if ks else "0"))
            for _ in range(2):
                if st: A(st.pop(0))
    for o in st: A(o)
    A.nop(8)
    for d in (DG, DU):
        A("v_mov_b32 v%d, v%d" % (d + 1, d))
    A("s_nop 1")
    for d in (DG, DU):
        A("v_permlane32_swap_b32 v%d, v%d" % (d, d + 1))
    for d in (DG, DU):
        A("v_fma_f32 v%d, -v52, v%d, v%d" % (d, d + 1, d))
    for d in (DG, DU):
        A("v_mul_f32 v%d, v%d, v55" % (d, d))
    A("v_max_f32 v%d, 0, v%d" % (DG, DG))
    A("v_mul_f32 v%d, v%d, v%d" % (DG, DG, DU))
    A("v_cvt_pk_bf16_f32 v%d, v%d, v%d" % (DG, DG, DG))
    A("ds_write_b16 v32, v%d" % DG)
    A("s_waitcnt lgkmcnt(0)")
    A("s_barrier")
    A("s_cmp_lg_u32 s%d, 0" % S_W)
    A("s_cbranch_scc1 L_end")
    A("ds_read_b32 v%d, v35" % DG)
    A("s_mov_b32 s%d, 0xfffefffe" % S_T0)
    A("s_mov_b32 exec_hi, 0")
    A("s_waitcnt lgkmcnt(0)")
    A("v_pk_min_u16 v%d, v%d, s%d" % (DG, DG, S_T0))
    A("global_store_dword v19, v%d, %s sc1" % (DG, sp(WS)))
    stamp(A, cfg, 12)
    stamp_flush(A, cfg)
    A("s_endpgm")

def role_S7(A, cfg):
    B, J = S_A, S_B
    SL = 61
    A.label("L_S7")
    A.vmreset()
    V_G, V_N = 5, 6
    A("v_lshrrev_b32 v%d, 4, v0" % V_G)
    A("v_and_b32 v%d, 15, v0" % V_N)
    A("s_lshl_b32 s%d, s%d, 2" % (SL, S_XCD))
    A("s_add_u32 s%d, s%d, s%d" % (SL, SL, B))
    A("v_lshrrev_b32 v16, 1, v0")
    A("v_bfe_u32 v17, v0, 4, 1")
    A("v_lshlrev_b32 v17, 2, v17")
    A("v_xor_b32 v16, v16, v17")
    A("v_and_b32 v17, 1, v0")
    A("v_lshlrev_b32 v17, 4, v17")
    A("v_lshl_add_u32 v8, v16, 10, v17")
    A("s_lshl_b32 s%d, s%d, 5" % (S_T0, SL))
    A("s_sub_u32 s%d, %d, s%d" % (S_T1, 1376*1024, S_T0))
    srd(A, SRD0, WD, 0, [S_T0]); A("s_mov_b32 s%d, s%d" % (SRD0 + 2, S_T1))
    A("s_mul_i32 m0, s%d, 11264" % S_W)
    A("s_mul_i32 s%d, s%d, %d" % (S_OFF, S_W, 11*32768))
    for st in range(11):
        A.vmem("buffer_load_dwordx4 v8, %s, s%d offen%s lds" % (sq(SRD0), S_OFF, cfg.nt_wd), "wd")
        if st < 10:
            A("s_add_u32 m0, m0, 0x400")
            A("s_add_u32 s%d, s%d, 0x8000" % (S_OFF, S_OFF))
    A("s_lshl_b32 s%d, s%d, 10" % (S_T0, S_W))
    A("s_lshl_b32 s%d, s%d, 5" % (S_T1, SL))
    A("s_add_u32 s%d, s%d, s%d" % (S_T0, S_T0, S_T1))
    A("v_and_b32 v16, 7, v0")
    A("v_lshlrev_b32 v16, 2, v16")
    A("v_add_u32 v10, s%d, v16" % S_T0)
    A.vmem("global_load_dword v12, v10, %s" % sp(X), "x")
    A("s_lshl_b32 s%d, s%d, 15" % (S_T0, S_W))
    A("s_add_u32 s%d, s%d, s%d" % (S_T0, S_T0, S_T1))
    A("s_add_u32 s%d, s%d, 0x%x" % (S_T0, S_T0, WS_OUTP))
    A("v_lshrrev_b32 v17, 3, v0")
    A("v_lshl_add_u32 v17, v17, 12, v16")
    A("v_add_u32 v11, s%d, v17" % S_T0)
    A("v_lshrrev_b32 v16, 2, v%d" % V_N)
    A("v_lshl_add_u32 v16, v%d, 3, v16" % V_G)
    A("v_and_b32 v17, 1, v%d" % V_G)
    A("v_lshlrev_b32 v17, 2, v17")
    A("v_xor_b32 v16, v16, v17")
    A("v_lshlrev_b32 v16, 5, v16")
    A("v_and_b32 v17, 3, v%d" % V_N)
    A("v_lshl_add_u32 v16, v17, 3, v16")
    A("s_mul_i32 s%d, s%d, 11264" % (S_T0, S_W))
    A("v_add_u32 v14, s%d, v16" % S_T0)
    A("v_xor_b32 v16, 128, v16")
    A("v_add_u32 v15, s%d, v16" % S_T0)
    A("v_lshrrev_b32 v16, 2, v%d" % V_N)
    A("v_mul_u32_u24 v16, %d, v16" % HM_ROW)
    A("v_lshl_add_u32 v16, v%d, 4, v16" % V_G)
    A("s_mul_i32 s%d, s%d, %d" % (S_T0, S_W, 11*64))
    A("s_add_u32 s%d, s%d, 0x%x" % (S_T0, S_T0, WS_HMID))
    A("v_add_u32 v18, s%d, v16" % S_T0)
    A("s_movk_i32 s%d, 640" % S_T1)
    A("s_cmp_eq_u32 s%d, 3" % S_W)
    A("s_cselect_b32 s%d, 576, s%d" % (S_T0, S_T1))
    A("v_add_u32 v19, s%d, v18" % S_T0)
    HR, RED = 49152, 49408
    A("s_lshl_b32 s%d, s%d, 6" % (S_T0, S_W))
    A("s_add_u32 s%d, s%d, %d" % (S_T0, S_T0, HR))
    A("v_and_b32 v16, 7, v0")
    A("v_lshlrev_b32 v16, 3, v16")
    A("v_add_u32 v20, s%d, v16" % S_T0)
    A("s_lshl_b32 s%d, s%d, 8" % (S_T0, S_W))
    A("s_add_u32 s%d, s%d, %d" % (S_T0, S_T0, RED))
    A("v_lshlrev_b32 v16, 2, v0")
    A("v_add_u32 v21, s%d, v16" % S_T0)
    A("v_add_u32 v22, %d, v16" % RED)
    A("v_add_u32 v23, %d, v16" % HR)
    A("s_lshl_b32 s%d, s%d, 5" % (S_T0, SL))
    A("v_lshlrev_b32 v16, 10, v%d" % V_G)
    A("v_lshl_add_u32 v16, v%d, 1, v16" % V_N)
    A("v_add_u32 v24, s%d, v16" % S_T0)
    A("s_waitcnt vmcnt(0)")
    stamp(A, cfg, 8)
    for st in range(11):
        A("ds_read_b64_tr_b16 %s, v14 offset:%d" % (ar(4*st, 2), st*1024))
        A("ds_read_b64_tr_b16 %s, v15 offset:%d" % (ar(4*st + 2, 2), st*1024))
    A.label("L_S7_r")
    for r in range(4): A("global_load_dword v%d, v11, %s offset:%d sc1" % (26 + r, sp(WS), r*1024))
    A("s_waitcnt vmcnt(0)")
    maxtree(A, 26, 4, dst=30)
    A("v_cmp_eq_u32 vcc, -1, v30")
    A("s_cbranch_vccz L_S7_rok")
    spin_guard(A, "L_fail", cfg.sl_res)
    A("s_branch L_S7_r")
    A.label("L_S7_rok")
    stamp(A, cfg, 9)
    for r in range(4):
        A("v_lshlrev_b32 v%d, 16, v%d" % (32 + r, 26 + r))
        A("v_and_b32 v%d, 0xffff0000, v%d" % (36 + r, 26 + r))
    for base in (32, 36):
        A("v_add_f32 v%d, v%d, v%d" % (base, base, base + 1))
        A("v_add_f32 v%d, v%d, v%d" % (base + 2, base + 2, base + 3))
        A("v_add_f32 v%d, v%d, v%d" % (base, base, base + 2))
    A("s_nop 1")
    for base in (32, 36):
        A("v_add_f32_dpp v%d, v%d, v%d row_ror:8 row_mask:0xf bank_mask:0xf" % (base, base, base))
    for sw in ("v_permlane16_swap_b32", "v_permlane32_swap_b32"):
        A("v_mov_b32 v33, v32\nv_mov_b32 v37, v36\ns_nop 1")
        A("%s v32, v33\n%s v36, v37" % (sw, sw))
        A("v_add_f32 v32, v32, v33\nv_add_f32 v36, v36, v37")
    A("v_lshlrev_b32 v33, 16, v12")
    A("v_and_b32 v37, 0xffff0000, v12")
    A("v_add_f32 v32, v32, v33")
    A("v_add_f32 v33, v36, v37")
    A("ds_write_b64 v20, v[32:33]")
    V_AF = 64
    A.label("L_S7_g")
    for st in range(11):
        if st < 10: A("global_load_dwordx4 %s, v18, %s offset:%d sc1" % (vr(V_AF + 4*st, 4), sp(WS), st*64))
        else: A("global_load_dwordx4 %s, v19, %s sc1" % (vr(V_AF + 4*st, 4), sp(WS)))
    A("s_waitcnt vmcnt(0)")
    maxtree(A, V_AF, 44, dst=30)
    A("v_cmp_eq_u32 vcc, -1, v30")
    A("s_cbranch_vccz L_S7_gok")
    spin_guard(A, "L_fail", cfg.sl_hm)
    A("s_branch L_S7_g")
    A.label("L_S7_gok")
    stamp(A, cfg, 10)
    A("s_waitcnt lgkmcnt(0)")
    for st in range(11):
        A("v_mfma_f32_16x16x32_bf16 v[40:43], %s, %s, %s" % (vr(V_AF + 4*st, 4), ar(4*st, 4), "v[40:43]" if st else "0"))
    A.nop(8)
    A("ds_write_b32 v21, v40")
    A("s_waitcnt lgkmcnt(0)")
    A("s_barrier")
    A("s_cmp_lg_u32 s%d, 0" % S_W)
    A("s_cbranch_scc1 L_end")
    for k in range(4): A("ds_read_b32 v%d, v22 offset:%d" % (44 + k, 256*k))
    A("ds_read_b32 v48, v23")
    A("s_waitcnt lgkmcnt(0)")
    A("v_add_f32 v44, v44, v45\nv_add_f32 v46, v46, v47\nv_add_f32 v44, v44, v48\nv_add_f32 v44, v44, v46")
    A("s_nop 1")
    A("v_mov_b32_dpp v45, v44 quad_perm:[1,0,3,2] row_mask:0xf bank_mask:0xf")
    A("v_cvt_pk_bf16_f32 v44, v44, v45")
    A("s_mov_b32 exec_lo, 0x55555555")
    A("s_mov_b32 exec_hi, 0x55555555")
    A("global_store_dword v24, v44, %s" % sp(OUT))
    stamp(A, cfg, 12)
    stamp_flush(A, cfg)
    A("s_endpgm")

def maxtree(A, base, n, dst=None):
    if dst is None: dst = base; cur = base; k = 1
    else:
        A("v_max3_u32 v%d, v%d, v%d, v%d" % (dst, base, base + 1, base + 2)); k = 3
    while k + 1 < n:
        A("v_max3_u32 v%d, v%d, v%d, v%d" % (dst, dst, base + k, base + k + 1)); k += 2
    if k < n: A("v_max_u32 v%d, v%d, v%d" % (dst, dst, base + k))

def build(cfg):
    A = Asm()
    prologue(A)
    role_W(A, cfg)
    role_A(A, cfg)
    A.label("L_fail")
    A("s_endpgm")
    A.label("L_end")
    A("s_endpgm")
    A.label("L_code_end")
    body = A.text()
    probs = check_hazards(body)
    for p in probs: print("HAZARD:", p, file=sys.stderr)
    head = open("cdna_kernels/" + KNAME[:-7] + ".s.ref").read().split("; Override launch geometry")[0]
    out = head + "; @launch grid=(256,1,1) block=(256,1,1) lds=163840\n"
    out += '.amdgcn_target "amdgcn-amd-amdhsa--gfx950"\n.text\n.globl %s\n.p2align 8\n.type %s,@function\n%s:\n' % (KNAME, KNAME, KNAME)
    out += body + "\n"
    out += """.section .rodata,"a"
.p2align 6
.amdhsa_kernel %s
  .amdhsa_next_free_vgpr 512
  .amdhsa_next_free_sgpr 102
  .amdhsa_accum_offset 256
  .amdhsa_group_segment_fixed_size 0
  .amdhsa_kernarg_size 104
  .amdhsa_user_sgpr_count 2
  .amdhsa_user_sgpr_kernarg_segment_ptr 1
  .amdhsa_system_sgpr_workgroup_id_x 1
  .amdhsa_float_denorm_mode_32 3
.end_amdhsa_kernel
""" % KNAME
    return out, probs

if __name__ == "__main__":
    cfg = Cfg()
    outp = "k.s"
    for a in sys.argv[1:]:
        if "=" in a:
            k, v = a.split("=", 1)
            if k == "out": outp = v
            else: setattr(cfg, k, tuple(int(x) for x in v.split(',')) if isinstance(getattr(cfg, k), tuple) else type(getattr(cfg, k))(v))
    txt, probs = build(cfg)
    open(outp, "w").write(txt)
    print("wrote", outp, len(txt), "bytes;", len(probs), "hazards")
```
